```python
import torch

def _softmax(x, axis=-1):
    return torch.softmax(x, dim=axis)
def _gelu(x):
    return torch.nn.functional.gelu(x, approximate="tanh")
def _silu(x):
    return torch.nn.functional.silu(x)
def _sigmoid(x):
    return torch.sigmoid(x)
def _layernorm(x, axis=-1, eps=1e-5):
    m = x.mean(dim=axis, keepdim=True)
    v = x.var(dim=axis, keepdim=True, unbiased=False)
    return (x - m) / torch.sqrt(v + eps)
def _scatter_add(tgt, idx, src, axis=0):
    return tgt.clone().index_add_(axis, idx, src)
def _segment_sum(src, seg, n):
    out = torch.zeros((n,) + src.shape[1:], dtype=src.dtype)
    return out.index_add_(0, seg, src)
def _pad(x, pw):
    flat = tuple(v for pair in reversed(pw) for v in pair)
    return torch.nn.functional.pad(x, flat)

kernel_name = 'parallel_sum__spectral_fnet__geglu_ffn__prompt'

def setup_inputs():

    _w = (lambda a: (lambda t: t.to(torch.bfloat16) if t.is_floating_point() else t)(torch.as_tensor(a)))
    def _A_setup():
        B, S, D = 1, 2048, 512
        ns = torch.arange(S)[:, None] * torch.arange(S)[None, :]
        nd = torch.arange(D)[:, None] * torch.arange(D)[None, :]
        Ws_re = torch.cos(-2.0 * torch.pi * ns / S).to(float)
        Ws_im = torch.sin(-2.0 * torch.pi * ns / S).to(float)
        Wd_re = torch.cos(-2.0 * torch.pi * nd / D).to(float)
        Wd_im = torch.sin(-2.0 * torch.pi * nd / D).to(float)
        return {
            "x": _w((lambda *s: torch.randn(*s, dtype=torch.bfloat16) * 0.05)(B, S, D)),
            "dft_seq_re": _w(Ws_re),
            "dft_seq_im": _w(Ws_im),
            "dft_hid_re": _w(Wd_re),
            "dft_hid_im": _w(Wd_im),
        }
    _A_in = _A_setup()

    def _B_setup():
        B, S, D, F = 1, 2048, 512, 1376
        return {
            "x": _w((lambda *s: torch.randn(*s, dtype=torch.bfloat16) * 0.05)(B, S, D)),
            "w_gate": _w((lambda *s: torch.randn(*s, dtype=torch.bfloat16) * 0.2)(D, F)),
            "w_up": _w((lambda *s: torch.randn(*s, dtype=torch.bfloat16) * 0.2)(D, F)),
            "w_down": _w((lambda *s: torch.randn(*s, dtype=torch.bfloat16) * 0.2)(F, D)),
        }
    _B_in = _B_setup()

    return {
        "A_x": _A_in["x"],
        "A_dft_seq_re": _A_in["dft_seq_re"],
        "A_dft_seq_im": _A_in["dft_seq_im"],
        "A_dft_hid_re": _A_in["dft_hid_re"],
        "A_dft_hid_im": _A_in["dft_hid_im"],
        "B_x": _B_in["x"],
        "B_w_gate": _B_in["w_gate"],
        "B_w_up": _B_in["w_up"],
        "B_w_down": _B_in["w_down"],
    }

def reference(A_x, A_dft_seq_re, A_dft_seq_im, A_dft_hid_re, A_dft_hid_im, B_x, B_w_gate, B_w_up, B_w_down):
    def _A_ref(x, dft_seq_re, dft_seq_im, dft_hid_re, dft_hid_im):
        a = torch.einsum("bsd,ed->bse", x, dft_hid_re)
        b = torch.einsum("bsd,ed->bse", x, dft_hid_im)
        y = torch.einsum("ts,bse->bte", dft_seq_re, a) - torch.einsum("ts,bse->bte", dft_seq_im, b)
        return y

    def _B_ref(x, w_gate, w_up, w_down):
        return (_gelu(x @ w_gate) * (x @ w_up)) @ w_down

    x = A_x
    xn = _layernorm(x, axis=-1)
    return x + _A_ref(xn, A_dft_seq_re, A_dft_seq_im, A_dft_hid_re, A_dft_hid_im) + _B_ref(xn, B_w_gate, B_w_up, B_w_down)
```

```python
import struct
import sys

NAME = "parallel_sum__spectral_fnet__geglu_ffn__prompt"

WS_XN = 0
WS_WGU = 2 << 20
WS_B = 8 << 20
WS_H = 16 << 20
WS_PART = 32 << 20
WS_SIZE = 268435456

KA_X, KA_WSRE, KA_WSIM, KA_WDRE, KA_WDIM, KA_BX, KA_WG, KA_WU, KA_WDN, KA_OUT, KA_DBG, KA_WS = [8 * i for i in range(12)]


def f32bits(x):
    return struct.unpack("<I", struct.pack("<f", x))[0]


class Asm:
    def __init__(self):
        self.lines = []

    def __call__(self, s):
        for ln in s.strip("\n").split("\n"):
            self.lines.append("    " + ln.strip())

    def label(self, s):
        self.lines.append(s + ":")

    def raw(self, s):
        self.lines.append(s)

    def text(self):
        return "\n".join(self.lines) + "\n"


def kernel_begin(a, name):
    a.raw(f".globl {name}")
    a.raw(".p2align 8")
    a.raw(f".type {name},@function")
    a.label(name)


def kernel_desc(name, vgpr, sgpr=96):
    acc = (vgpr + 3) // 4 * 4
    return f""".amdhsa_kernel {name}
  .amdhsa_next_free_vgpr {vgpr}
  .amdhsa_next_free_sgpr {sgpr}
  .amdhsa_accum_offset {acc}
  .amdhsa_group_segment_fixed_size 0
  .amdhsa_kernarg_size 96
  .amdhsa_user_sgpr_count 2
  .amdhsa_user_sgpr_kernarg_segment_ptr 1
  .amdhsa_system_sgpr_workgroup_id_x 1
  .amdhsa_float_denorm_mode_32 3
.end_amdhsa_kernel
"""


def srd(a, d, base, off, size):
    if off:
        a(f"s_add_u32 s{d}, s{base}, {off}")
        a(f"s_addc_u32 s{d+1}, s{base+1}, 0")
    else:
        a(f"s_mov_b32 s{d}, s{base}")
        a(f"s_mov_b32 s{d+1}, s{base+1}")
    a(f"s_mov_b32 s{d+2}, {size}")
    a(f"s_mov_b32 s{d+3}, 0x00020000")


N_LN = 2048
N_WGU = 22 * 64
N_WD = 8 * 176
PREP_TASKS = N_LN + N_WGU + N_WD
PREP_WGS = PREP_TASKS // 4


def gen_prep(a):
    name = "prep_kernel"
    kernel_begin(a, name)
    a(f"""
    s_cmp_ge_u32 s2, {PREP_WGS}
    s_cbranch_scc1 L_prep_end
    s_load_dwordx2 s[4:5], s[0:1], {KA_X}
    s_load_dwordx4 s[8:11], s[0:1], {KA_WG}
    s_load_dwordx2 s[12:13], s[0:1], {KA_WDN}
    s_load_dwordx2 s[14:15], s[0:1], {KA_WS}
    v_lshrrev_b32 v1, 6, v0
    v_and_b32 v2, 63, v0
    s_nop 0
    v_readfirstlane_b32 s3, v1
    s_lshl_b32 s16, s2, 2
    s_nop 3
    s_add_u32 s16, s16, s3
    s_waitcnt lgkmcnt(0)
    s_cmp_ge_u32 s16, {N_LN}
    s_cbranch_scc1 L_prep_wgu
    """)
    srd(a, 20, 4, 0, 2048 * 1024)
    srd(a, 24, 14, WS_XN, 2048 * 1024)
    a("""
    s_lshl_b32 s17, s16, 10
    v_lshlrev_b32 v3, 4, v2
    buffer_load_dwordx4 v[4:7], v3, s[20:23], s17 offen
    v_lshlrev_b32 v30, 2, v2
    v_xor_b32 v31, 4, v30
    v_xor_b32 v32, 8, v30
    v_xor_b32 v33, 16, v30
    v_xor_b32 v34, 32, v30
    v_xor_b32 v35, 64, v30
    v_xor_b32 v36, 128, v30
    s_waitcnt vmcnt(0)
    """)
    for i in range(4):
        a(f"v_lshlrev_b32 v{8+2*i}, 16, v{4+i}")
        a(f"v_and_b32 v{9+2*i}, 0xffff0000, v{4+i}")
    a("""
    v_add_f32 v16, v8, v9
    v_add_f32 v17, v10, v11
    v_add_f32 v18, v12, v13
    v_add_f32 v19, v14, v15
    v_add_f32 v16, v16, v17
    v_add_f32 v18, v18, v19
    v_add_f32 v16, v16, v18
    """)
    for r in range(31, 37):
        a(f"""
        ds_bpermute_b32 v17, v{r}, v16
        s_waitcnt lgkmcnt(0)
        v_add_f32 v16, v16, v17
        """)
    a(f"v_mul_f32 v16, 0x{f32bits(1.0/512):08x}, v16")
    for i in range(8):
        a(f"v_sub_f32 v{20+i}, v{8+i}, v16")
    a("v_mul_f32 v17, v20, v20")
    for i in range(1, 8):
        a(f"v_fmac_f32 v17, v{20+i}, v{20+i}")
    for r in range(31, 37):
        a(f"""
        ds_bpermute_b32 v18, v{r}, v17
        s_waitcnt lgkmcnt(0)
        v_add_f32 v17, v17, v18
        """)
    a(f"""
    v_mul_f32 v17, 0x{f32bits(1.0/512):08x}, v17
    v_cvt_pk_bf16_f32 v18, v16, v17
    v_lshlrev_b32 v16, 16, v18
    v_and_b32 v17, 0xffff0000, v18
    v_add_f32 v17, 0x{f32bits(1e-5):08x}, v17
    v_cvt_pk_bf16_f32 v18, v17, v17
    v_lshlrev_b32 v17, 16, v18
    v_sqrt_f32 v17, v17
    s_nop 0
    v_cvt_pk_bf16_f32 v18, v17, v17
    v_lshlrev_b32 v17, 16, v18
    v_rcp_f32 v19, v17
    """)
    for i in range(8):
        a(f"v_sub_f32 v{20+i}, v{8+i}, v16")
    for i in range(4):
        a(f"v_cvt_pk_bf16_f32 v{4+i}, v{20+2*i}, v{21+2*i}")
    for i in range(4):
        a(f"v_lshlrev_b32 v{8+2*i}, 16, v{4+i}")
        a(f"v_and_b32 v{9+2*i}, 0xffff0000, v{4+i}")
    for i in range(8):
        a(f"v_mul_f32 v{20+i}, v{8+i}, v19")
    for i in range(8):
        a(f"v_fma_f32 v{8+i}, -v{20+i}, v17, v{8+i}")
    for i in range(8):
        a(f"v_fmac_f32 v{20+i}, v{8+i}, v19")
    for i in range(4):
        a(f"v_cvt_pk_bf16_f32 v{4+i}, v{20+2*i}, v{21+2*i}")
    a("""
    buffer_store_dwordx4 v[4:7], v3, s[24:27], s17 offen
    s_endpgm
    """)
    a.label("L_prep_wgu")
    a(f"""
    s_cmp_ge_u32 s16, {N_LN + N_WGU}
    s_cbranch_scc1 L_prep_wd
    s_sub_u32 s16, s16, {N_LN}
    s_lshr_b32 s17, s16, 6
    s_and_b32 s18, s16, 63
    """)
    srd(a, 20, 8, 0, 512 * 2752)
    srd(a, 24, 10, 0, 512 * 2752)
    srd(a, 28, 14, WS_WGU, 2816 * 1024)
    a("""
    s_lshl_b32 s19, s17, 6
    v_add_u32 v3, s19, v2
    v_lshlrev_b32 v4, 1, v3
    s_mul_i32 s32, s18, 22016
    """)
    for j in range(8):
        a(f"buffer_load_ushort v{16+j}, v4, s[20:23], s32 offen")
        a(f"buffer_load_ushort v{24+j}, v4, s[24:27], s32 offen")
        if j < 7:
            a("s_add_u32 s32, s32, 2752")
    a("""
    v_lshrrev_b32 v5, 5, v3
    v_lshlrev_b32 v5, 6, v5
    v_and_b32 v6, 31, v3
    v_add_u32 v5, v5, v6
    v_lshlrev_b32 v5, 10, v5
    s_lshl_b32 s33, s18, 4
    v_mov_b32 v7, 1376
    v_cmp_gt_u32 vcc, v7, v3
    s_waitcnt vmcnt(0)
    """)
    for j in range(8):
        a(f"v_lshl_or_b32 v{8+j}, v{17+2*j}, 16, v{16+2*j}")
    for j in range(8):
        a(f"v_cndmask_b32 v{8+j}, 0, v{8+j}, vcc")
    a("""
    buffer_store_dwordx4 v[8:11], v5, s[28:31], s33 offen
    s_add_u32 s33, s33, 32768
    buffer_store_dwordx4 v[12:15], v5, s[28:31], s33 offen
    s_endpgm
    """)
    a.label("L_prep_wd")
    a(f"""
    s_sub_u32 s16, s16, {N_LN + N_WGU}
    s_mul_hi_u32 s17, s16, {((1 << 32) + 175) // 176}
    s_mul_i32 s18, s17, 176
    s_sub_u32 s18, s16, s18
    """)
    srd(a, 20, 12, 0, 1376 * 1024)
    srd(a, 28, 14, WS_B + (4 << 20), 512 * 4096)
    a("""
    s_lshl_b32 s19, s17, 6
    v_add_u32 v3, s19, v2
    v_lshlrev_b32 v4, 1, v3
    s_lshl_b32 s32, s18, 13
    """)
    for j in range(8):
        a(f"buffer_load_ushort v{16+j}, v4, s[20:23], s32 offen")
        if j < 7:
            a("s_add_u32 s32, s32, 1024")
    a("""
    v_lshlrev_b32 v5, 12, v3
    s_lshl_b32 s33, s18, 4
    s_waitcnt vmcnt(0)
    """)
    for j in range(4):
        a(f"v_lshl_or_b32 v{8+j}, v{17+2*j}, 16, v{16+2*j}")
    a("""
    buffer_store_dwordx4 v[8:11], v5, s[28:31], s33 offen
    """)
    a.label("L_prep_end")
    a("s_endpgm")
    return kernel_desc(name, 40)


V_LDP = 4
V_LDQ = 8
V_RDP = 12
V_RDQ = 16
V_FA = 20
V_FB = 36
V_ACC = 52
V_TMP = 116

S_SRDP = 4
S_SRDQ = 8
S_OFFP = 12
S_OFFQ = 13
S_WOFF = 14
S_N = 15
S_NEND = 16
S_JL = 17
S_JEND = 18
S_WAVE = 19


def acc(mt, nt):
    b = V_ACC + (mt * 2 + nt) * 16
    return f"v[{b}:{b+15}]"


def gemm_setup(a, rowP_s, rowQ_s, strideP, strideQ):
    t = V_TMP
    a(f"""
    v_and_b32 v1, 63, v0
    v_lshrrev_b32 v2, 6, v0
    s_nop 0
    v_readfirstlane_b32 s{S_WAVE}, v2
    s_nop 3
    s_lshl_b32 s{S_WOFF}, s{S_WAVE}, 12
    """)
    a(f"""
    v_lshrrev_b32 v{t}, 3, v1
    v_lshlrev_b32 v{t+1}, 5, v2
    v_add_u32 v{t}, v{t}, v{t+1}
    v_and_b32 v{t+2}, 7, v1
    v_lshrrev_b32 v{t+3}, 4, v1
    v_xor_b32 v{t+2}, v{t+2}, v{t+3}
    """)
    for (vld, row_s, stride) in ((V_LDP, rowP_s, strideP), (V_LDQ, rowQ_s, strideQ)):
        sh = stride.bit_length() - 1
        assert 1 << sh == stride
        for i in range(4):
            a(f"v_add_u32 v{t+4}, s{row_s}, v{t}")
            if i:
                a(f"v_add_u32 v{t+4}, {8*i}, v{t+4}")
            a(f"v_lshlrev_b32 v{t+4}, {sh}, v{t+4}")
            if i & 1:
                a(f"v_xor_b32 v{t+5}, 4, v{t+2}")
            else:
                a(f"v_mov_b32 v{t+5}, v{t+2}")
            a(f"v_lshlrev_b32 v{t+5}, 4, v{t+5}")
            a(f"v_add_u32 v{vld+i}, v{t+4}, v{t+5}")
            if i:
                a(f"v_subrev_u32 v{vld+i}, {1024*i}, v{vld+i}")
    a(f"""
    v_and_b32 v{t}, 31, v1
    v_lshrrev_b32 v{t+1}, 5, v1
    v_lshrrev_b32 v{t+2}, 1, v1
    v_and_b32 v{t+2}, 7, v{t+2}
    v_xor_b32 v{t+2}, v{t+2}, v{t+1}
    v_lshrrev_b32 v{t+3}, 1, v2
    v_lshlrev_b32 v{t+3}, 6, v{t+3}
    v_add_u32 v{t+3}, v{t+3}, v{t}
    v_lshlrev_b32 v{t+3}, 7, v{t+3}
    v_and_b32 v{t+4}, 1, v2
    v_lshlrev_b32 v{t+4}, 6, v{t+4}
    v_add_u32 v{t+4}, v{t+4}, v{t}
    v_lshlrev_b32 v{t+4}, 7, v{t+4}
    v_add_u32 v{t+4}, 0x10000, v{t+4}
    """)
    for kk in range(4):
        a(f"v_xor_b32 v{t+5}, {2*kk}, v{t+2}")
        a(f"v_lshlrev_b32 v{t+5}, 4, v{t+5}")
        a(f"v_add_u32 v{V_RDP+kk}, v{t+3}, v{t+5}")
        a(f"v_add_u32 v{V_RDQ+kk}, v{t+4}, v{t+5}")
    for i in range(64):
        a(f"v_mov_b32 v{V_ACC+i}, 0")


def gemm_dma(a, stage):
    a(f"s_add_u32 m0, s{S_WOFF}, {stage*16384}")
    a("s_nop 0")
    for i in range(4):
        a(f"buffer_load_dwordx4 v{V_LDP+i}, s[{S_SRDP}:{S_SRDP+3}], s{S_OFFP} offen offset:{1024*i} lds")
    a(f"s_add_u32 m0, s{S_WOFF}, {65536 + stage*16384}")
    a("s_nop 0")
    for i in range(4):
        a(f"buffer_load_dwordx4 v{V_LDQ+i}, s[{S_SRDQ}:{S_SRDQ+3}], s{S_OFFQ} offen offset:{1024*i} lds")


def gemm_reads(a, fset, stage, kk):
    for mt in range(2):
        a(f"ds_read_b128 v[{fset+4*mt}:{fset+4*mt+3}], v{V_RDP+kk} offset:{stage*16384 + mt*4096}")
    for nt in range(2):
        a(f"ds_read_b128 v[{fset+8+4*nt}:{fset+8+4*nt+3}], v{V_RDQ+kk} offset:{stage*16384 + nt*4096}")


def gemm_mfma(a, fset):
    for mt in range(2):
        for nt in range(2):
            a(f"v_mfma_f32_32x32x16_bf16 {acc(mt,nt)}, v[{fset+4*mt}:{fset+4*mt+3}], v[{fset+8+4*nt}:{fset+8+4*nt+3}], {acc(mt,nt)}")


def gemm_loop(a, pfx, step_setup):
    NS = 4
    for st in range(NS):
        step_setup(a)
        gemm_dma(a, st)
    a(f"""
    s_mov_b32 s{S_N}, 0
    s_waitcnt vmcnt(24)
    s_barrier
    """)
    gemm_reads(a, V_FA, 0, 0)
    a.label(f"{pfx}_loop")
    for u in range(NS):
        gemm_reads(a, V_FB, u, 1)
        a("s_waitcnt lgkmcnt(4)")
        gemm_mfma(a, V_FA)
        gemm_reads(a, V_FA, u, 2)
        a("s_waitcnt lgkmcnt(4)")
        gemm_mfma(a, V_FB)
        gemm_reads(a, V_FB, u, 3)
        a("s_waitcnt lgkmcnt(4)")
        gemm_mfma(a, V_FA)
        step_setup(a)
        a("s_waitcnt vmcnt(16) lgkmcnt(0)")
        a("s_barrier")
        gemm_dma(a, u)
        gemm_reads(a, V_FA, (u + 1) % NS, 0)
        gemm_mfma(a, V_FB)
        a(f"s_add_u32 s{S_N}, s{S_N}, 1")
        a(f"s_cmp_ge_u32 s{S_N}, s{S_NEND}")
        if u < NS - 1:
            a(f"s_cbranch_scc1 {pfx}_done")
        else:
            a(f"s_cbranch_scc0 {pfx}_loop")
    a.label(f"{pfx}_done")
    a("s_waitcnt vmcnt(0) lgkmcnt(0)")
    a("s_nop 15")


G1_WGS = 16 * 30


def gen_gemm1(a):
    name = "gemm1_kernel"
    kernel_begin(a, name)
    a(f"""
    s_cmp_ge_u32 s2, {G1_WGS}
    s_cbranch_scc1 L_g1_end
    s_load_dwordx4 s[40:43], s[0:1], {KA_WDRE}
    s_load_dwordx2 s[44:45], s[0:1], {KA_WS}
    s_and_b32 s20, s2, 15
    s_lshr_b32 s21, s2, 4
    s_lshl_b32 s22, s20, 7
    s_waitcnt lgkmcnt(0)
    s_cmp_ge_u32 s21, 8
    s_cbranch_scc1 L_g1_ffn
    """)
    srd(a, S_SRDP, 44, WS_XN, 2048 * 1024)
    a("""
    s_cmp_ge_u32 s21, 4
    s_cselect_b64 s[46:47], s[42:43], s[40:41]
    s_and_b32 s23, s21, 3
    s_lshl_b32 s23, s23, 7
    s_mov_b32 s24, s22
    s_mov_b32 s25, s23
    """)
    srd(a, S_SRDQ, 46, 0, 512 * 1024)
    a("s_branch L_g1_main")
    a.label("L_g1_ffn")
    srd(a, S_SRDP, 44, WS_WGU, 2816 * 1024)
    srd(a, S_SRDQ, 44, WS_XN, 2048 * 1024)
    a("""
    s_sub_u32 s23, s21, 8
    s_lshl_b32 s23, s23, 7
    s_mov_b32 s24, s23
    s_mov_b32 s25, s22
    """)
    a.label("L_g1_main")
    a(f"""
    s_mov_b32 s26, s{S_SRDP+2}
    s_mov_b32 s27, s{S_SRDQ+2}
    s_mov_b32 s{S_JL}, 0
    s_mov_b32 s{S_JEND}, 8
    s_mov_b32 s{S_NEND}, 8
    """)
    gemm_setup(a, 24, 25, 1024, 1024)

    def step_setup(a):
        a(f"""
        s_lshl_b32 s{S_OFFP}, s{S_JL}, 7
        s_mov_b32 s{S_OFFQ}, s{S_OFFP}
        s_cmp_lt_u32 s{S_JL}, s{S_JEND}
        s_cselect_b32 s{S_SRDP+2}, s26, 0
        s_cselect_b32 s{S_SRDQ+2}, s27, 0
        s_add_u32 s{S_JL}, s{S_JL}, 1
        """)

    gemm_loop(a, "L_g1", step_setup)
    t = V_TMP
    a(f"""
    v_and_b32 v1, 63, v0
    v_and_b32 v{t}, 31, v1
    v_lshrrev_b32 v{t+1}, 5, v1
    s_lshr_b32 s28, s{S_WAVE}, 1
    s_and_b32 s29, s{S_WAVE}, 1
    s_cmp_ge_u32 s21, 8
    s_cbranch_scc1 L_g1_epi_ffn
    """)
    a("s_lshr_b32 s30, s21, 2")
    a("s_lshl_b32 s30, s30, 21")
    a(f"s_add_u32 s30, s30, {WS_B}")
    a("s_add_u32 s32, s44, s30")
    a("s_addc_u32 s33, s45, 0")
    a(f"s_mov_b32 s34, {512*4096}")
    a("s_mov_b32 s35, 0x00020000")
    a(f"""
    s_lshl_b32 s30, s29, 6
    s_add_u32 s30, s30, s25
    v_add_u32 v{t+2}, s30, v{t}
    v_lshlrev_b32 v{t+2}, 12, v{t+2}
    s_lshl_b32 s30, s28, 6
    s_add_u32 s30, s30, s24
    v_lshlrev_b32 v{t+3}, 2, v{t+1}
    v_add_u32 v{t+3}, s30, v{t+3}
    v_lshlrev_b32 v{t+3}, 1, v{t+3}
    v_add_u32 v{t+2}, v{t+2}, v{t+3}
    s_cmp_ge_u32 s21, 4
    s_cselect_b32 s31, 0x80008000, 0
    s_mov_b32 s36, 0
    s_mov_b32 s37, 0x20000
    """)
    for mt in range(2):
        for nt in range(2):
            b = V_ACC + (mt * 2 + nt) * 16
            for q in range(4):
                a(f"v_cvt_pk_bf16_f32 v{t+4}, v{b+4*q}, v{b+4*q+1}")
                a(f"v_cvt_pk_bf16_f32 v{t+5}, v{b+4*q+2}, v{b+4*q+3}")
                a(f"v_xor_b32 v{t+4}, s31, v{t+4}")
                a(f"v_xor_b32 v{t+5}, s31, v{t+5}")
                a(f"buffer_store_dwordx2 v[{t+4}:{t+5}], v{t+2}, s[32:35], s{36+nt} offen offset:{mt*64 + q*16}")
    a("s_endpgm")
    a.label("L_g1_epi_ffn")
    srd(a, 32, 44, WS_H, 2048 * 4096)
    c0 = -2.0 * 0.7978845608028654 * 1.4426950408889634
    c1 = c0 * 0.044715
    a(f"""
    s_lshl_b32 s30, s29, 6
    s_add_u32 s30, s30, s25
    v_add_u32 v{t+2}, s30, v{t}
    v_lshlrev_b32 v{t+2}, 12, v{t+2}
    s_lshl_b32 s30, s28, 6
    s_add_u32 s30, s30, s24
    s_lshr_b32 s30, s30, 1
    v_lshlrev_b32 v{t+3}, 2, v{t+1}
    v_add_u32 v{t+3}, s30, v{t+3}
    v_lshlrev_b32 v{t+3}, 1, v{t+3}
    v_add_u32 v{t+2}, v{t+2}, v{t+3}
    s_mov_b32 s36, 0
    s_mov_b32 s37, 0x20000
    v_mov_b32 v{t+4}, 0x{f32bits(c0):08x}
    s_mov_b32 s38, 0x{f32bits(c1):08x}
    """)
    g = t + 8
    for nt in range(2):
        bg = V_ACC + (0 * 2 + nt) * 16
        bu = V_ACC + (1 * 2 + nt) * 16
        for q in range(4):
            a(f"v_cvt_pk_bf16_f32 v{g+8}, v{bg+4*q}, v{bg+4*q+1}")
            a(f"v_cvt_pk_bf16_f32 v{g+9}, v{bg+4*q+2}, v{bg+4*q+3}")
            a(f"v_cvt_pk_bf16_f32 v{g+10}, v{bu+4*q}, v{bu+4*q+1}")
            a(f"v_cvt_pk_bf16_f32 v{g+11}, v{bu+4*q+2}, v{bu+4*q+3}")
            for p in range(2):
                a(f"v_lshlrev_b32 v{g+2*p}, 16, v{g+8+p}")
                a(f"v_and_b32 v{g+2*p+1}, 0xffff0000, v{g+8+p}")
                a(f"v_lshlrev_b32 v{g+4+2*p}, 16, v{g+10+p}")
                a(f"v_and_b32 v{g+4+2*p+1}, 0xffff0000, v{g+10+p}")
            for r in range(4):
                a(f"v_mul_f32 v{g+12+r}, v{g+r}, v{g+r}")
            for r in range(4):
                a(f"v_fma_f32 v{g+12+r}, v{g+12+r}, s38, v{t+4}")
            for r in range(4):
                a(f"v_mul_f32 v{g+12+r}, v{g+12+r}, v{g+r}")
            for r in range(4):
                a(f"v_exp_f32 v{g+12+r}, v{g+12+r}")
            a("s_nop 0")
            for r in range(4):
                a(f"v_add_f32 v{g+12+r}, 1.0, v{g+12+r}")
            for r in range(4):
                a(f"v_rcp_f32 v{g+12+r}, v{g+12+r}")
            a("s_nop 0")
            for r in range(4):
                a(f"v_mul_f32 v{g+12+r}, v{g+12+r}, v{g+r}")
            a(f"v_cvt_pk_bf16_f32 v{g+8}, v{g+12}, v{g+13}")
            a(f"v_cvt_pk_bf16_f32 v{g+9}, v{g+14}, v{g+15}")
            for p in range(2):
                a(f"v_lshlrev_b32 v{g+12+2*p}, 16, v{g+8+p}")
                a(f"v_and_b32 v{g+12+2*p+1}, 0xffff0000, v{g+8+p}")
            for r in range(4):
                a(f"v_mul_f32 v{g+12+r}, v{g+12+r}, v{g+4+r}")
            a(f"v_cvt_pk_bf16_f32 v{t+6}, v{g+12}, v{g+13}")
            a(f"v_cvt_pk_bf16_f32 v{t+7}, v{g+14}, v{g+15}")
            a(f"buffer_store_dwordx2 v[{t+6}:{t+7}], v{t+2}, s[32:35], s{36+nt} offen offset:{q*16}")
    a.label("L_g1_end")
    a("s_endpgm")
    return kernel_desc(name, V_TMP + 28)


G2_WGS = 256


def gen_gemm2(a):
    name = "gemm2_kernel"
    kernel_begin(a, name)
    a(f"""
    s_cmp_ge_u32 s2, {G2_WGS}
    s_cbranch_scc1 L_g2_end
    s_load_dwordx4 s[40:43], s[0:1], {KA_WSRE}
    s_load_dwordx2 s[44:45], s[0:1], {KA_WS}
    s_and_b32 s20, s2, 7
    s_lshr_b32 s21, s2, 3
    s_lshl_b32 s20, s20, 1
    s_and_b32 s22, s21, 1
    s_add_u32 s20, s20, s22
    s_lshr_b32 s22, s21, 1
    s_and_b32 s22, s22, 3
    s_lshr_b32 s23, s21, 3
    s_mul_i32 s{S_JL}, s23, 86
    s_add_u32 s{S_JEND}, s{S_JL}, 86
    s_lshr_b32 s{S_JL}, s{S_JL}, 2
    s_lshr_b32 s{S_JEND}, s{S_JEND}, 2
    s_sub_u32 s{S_NEND}, s{S_JEND}, s{S_JL}
    s_lshl_b32 s24, s22, 7
    s_lshl_b32 s25, s20, 7
    s_waitcnt lgkmcnt(0)
    """)
    srd(a, S_SRDP, 44, WS_B, 3 * 512 * 4096)
    a(f"""
    s_add_u32 s46, s44, {WS_H}
    s_addc_u32 s47, s45, 0
    s_mov_b32 s{S_SRDQ+3}, 0x00020000
    """)
    gemm_setup(a, 24, 25, 4096, 4096)

    def step_setup(a):
        a(f"""
        s_lshr_b32 s26, s{S_JL}, 5
        s_and_b32 s{S_OFFQ}, s{S_JL}, 31
        s_lshl_b32 s{S_OFFQ}, s{S_OFFQ}, 7
        s_lshl_b32 s27, s26, 21
        s_add_u32 s{S_OFFP}, s{S_OFFQ}, s27
        s_cmp_eq_u32 s26, 0
        s_cselect_b64 s[{S_SRDQ}:{S_SRDQ+1}], s[40:41], s[42:43]
        s_cmp_ge_u32 s26, 2
        s_cselect_b64 s[{S_SRDQ}:{S_SRDQ+1}], s[46:47], s[{S_SRDQ}:{S_SRDQ+1}]
        s_cmp_lt_u32 s{S_JL}, s{S_JEND}
        s_cselect_b32 s{S_SRDP+2}, {3*512*4096}, 0
        s_cselect_b32 s{S_SRDQ+2}, {2048*4096}, 0
        s_add_u32 s{S_JL}, s{S_JL}, 1
        """)

    gemm_loop(a, "L_g2", step_setup)
    t = V_TMP
    srd(a, 32, 44, WS_PART, 256 * 65536)
    a(f"""
    s_lshl_b32 s30, s20, 2
    s_add_u32 s30, s30, s22
    s_lshl_b32 s30, s30, 2
    s_add_u32 s30, s30, s23
    s_lshl_b32 s30, s30, 16
    s_lshl_b32 s31, s{S_WAVE}, 14
    s_add_u32 s30, s30, s31
    v_and_b32 v1, 63, v0
    v_lshlrev_b32 v{t}, 4, v1
    """)
    for tl in range(4):
        for q in range(4):
            b = V_ACC + tl * 16 + 4 * q
            a(f"buffer_store_dwordx4 v[{b}:{b+3}], v{t}, s[32:35], s30 offen offset:{q*1024}")
        a("s_add_u32 s30, s30, 4096")
    a.label("L_g2_end")
    a("s_endpgm")
    return kernel_desc(name, V_TMP + 8)


R_WGS = 256


def gen_reduce(a):
    name = "reduce_kernel"
    kernel_begin(a, name)
    a(f"""
    s_cmp_ge_u32 s2, {R_WGS}
    s_cbranch_scc1 L_r_end
    s_load_dwordx2 s[40:41], s[0:1], {KA_X}
    s_load_dwordx2 s[42:43], s[0:1], {KA_OUT}
    s_load_dwordx2 s[44:45], s[0:1], {KA_WS}
    v_lshrrev_b32 v2, 6, v0
    v_and_b32 v1, 63, v0
    s_nop 0
    v_readfirstlane_b32 s19, v2
    s_lshr_b32 s20, s2, 2
    s_and_b32 s21, s2, 3
    s_waitcnt lgkmcnt(0)
    """)
    srd(a, 4, 44, WS_PART, 256 * 65536)
    srd(a, 8, 40, 0, 2048 * 1024)
    srd(a, 12, 42, 0, 2048 * 1024)
    a("""
    s_lshl_b32 s22, s20, 18
    s_lshl_b32 s23, s19, 14
    s_add_u32 s22, s22, s23
    s_lshl_b32 s23, s21, 12
    s_add_u32 s22, s22, s23
    v_lshlrev_b32 v3, 4, v1
    """)
    for sk in range(4):
        for q in range(4):
            b = 16 + (sk * 4 + q) * 4
            a(f"buffer_load_dwordx4 v[{b}:{b+3}], v3, s[4:7], s22 offen offset:{q*1024}")
        a("s_add_u32 s22, s22, 0x10000")
    a("""
    s_lshr_b32 s24, s20, 2
    s_lshl_b32 s24, s24, 7
    s_and_b32 s25, s19, 1
    s_lshl_b32 s25, s25, 6
    s_add_u32 s24, s24, s25
    s_and_b32 s25, s21, 1
    s_lshl_b32 s25, s25, 5
    s_add_u32 s24, s24, s25
    s_and_b32 s26, s20, 3
    s_lshl_b32 s26, s26, 7
    s_lshr_b32 s25, s19, 1
    s_lshl_b32 s25, s25, 6
    s_add_u32 s26, s26, s25
    s_lshr_b32 s25, s21, 1
    s_lshl_b32 s25, s25, 5
    s_add_u32 s26, s26, s25
    v_and_b32 v4, 31, v1
    v_add_u32 v4, s24, v4
    v_lshlrev_b32 v4, 10, v4
    v_lshrrev_b32 v5, 5, v1
    v_lshlrev_b32 v5, 2, v5
    v_add_u32 v5, s26, v5
    v_lshlrev_b32 v5, 1, v5
    v_add_u32 v4, v4, v5
    """)
    for q in range(4):
        a(f"buffer_load_dwordx2 v[{8+2*q}:{9+2*q}], v4, s[8:11], 0 offen offset:{q*16}")
    a("s_waitcnt vmcnt(0)")
    for q in range(4):
        for r in range(4):
            b = 16 + q * 4 + r
            a(f"v_add_f32 v{b}, v{b}, v{b+16}")
            a(f"v_add_f32 v{b+32}, v{b+32}, v{b+48}")
            a(f"v_add_f32 v{b}, v{b}, v{b+32}")
        b = 16 + q * 4
        a(f"v_lshlrev_b32 v6, 16, v{8+2*q}")
        a(f"v_and_b32 v7, 0xffff0000, v{8+2*q}")
        a(f"v_add_f32 v{b}, v{b}, v6")
        a(f"v_add_f32 v{b+1}, v{b+1}, v7")
        a(f"v_lshlrev_b32 v6, 16, v{9+2*q}")
        a(f"v_and_b32 v7, 0xffff0000, v{9+2*q}")
        a(f"v_add_f32 v{b+2}, v{b+2}, v6")
        a(f"v_add_f32 v{b+3}, v{b+3}, v7")
        a(f"v_cvt_pk_bf16_f32 v{8+2*q}, v{b}, v{b+1}")
        a(f"v_cvt_pk_bf16_f32 v{9+2*q}, v{b+2}, v{b+3}")
        a(f"buffer_store_dwordx2 v[{8+2*q}:{9+2*q}], v4, s[12:15], 0 offen offset:{q*16}")
    a.label("L_r_end")
    a("s_endpgm")
    return kernel_desc(name, 80)


def main():
    hdr = open("cdna_kernels/" + NAME + ".s.ref").read().split("\n")
    top = [l for l in hdr if l.startswith(";") and "@launch" not in l and "Override" not in l and "grid=ceil" not in l]
    a = Asm()
    descs = []
    a.raw('.amdgcn_target "amdgcn-amd-amdhsa--gfx950"')
    a.raw(".text")
    descs.append(gen_prep(a))
    descs.append(gen_gemm1(a))
    descs.append(gen_gemm2(a))
    descs.append(gen_reduce(a))
    out = "\n".join(top) + "\n"
    out += f"; @launch kernel=prep_kernel grid=({PREP_WGS},1,1) block=(256,1,1) lds=0\n"
    out += f"; @launch kernel=gemm1_kernel grid=({G1_WGS},1,1) block=(256,1,1) lds=131072\n"
    out += f"; @launch kernel=gemm2_kernel grid=({G2_WGS},1,1) block=(256,1,1) lds=131072\n"
    out += f"; @launch kernel=reduce_kernel grid=({R_WGS},1,1) block=(256,1,1) lds=0\n"
    out += a.text()
    out += '.section .rodata,"a"\n'
    for d in descs:
        out += ".p2align 6\n" + d
    path = sys.argv[1] if len(sys.argv) > 1 else "cdna_kernels/" + NAME + ".s"
    open(path, "w").write(out)


if __name__ == "__main__":
    main()
```

```python
import struct
import sys

NAME = "parallel_sum__spectral_fnet__geglu_ffn__prompt"
OPT = {}

WS_XN = 0
WS_WGU = 2 << 20
WS_B = 8 << 20
WS_H = 16 << 20
WS_PART = 32 << 20
WS_SIZE = 268435456

KA_X, KA_WSRE, KA_WSIM, KA_WDRE, KA_WDIM, KA_BX, KA_WG, KA_WU, KA_WDN, KA_OUT, KA_DBG, KA_WS = [8 * i for i in range(12)]


def f32bits(x):
    return struct.unpack("<I", struct.pack("<f", x))[0]


class Asm:
    def __init__(self):
        self.lines = []

    def __call__(self, s):
        for ln in s.strip("\n").split("\n"):
            self.lines.append("    " + ln.strip())

    def label(self, s):
        self.lines.append(s + ":")

    def raw(self, s):
        self.lines.append(s)

    def text(self):
        return "\n".join(self.lines) + "\n"


def kernel_begin(a, name):
    a.raw(f".globl {name}")
    a.raw(".p2align 8")
    a.raw(f".type {name},@function")
    a.label(name)


def kernel_desc(name, vgpr, sgpr=96):
    acc = (vgpr + 3) // 4 * 4
    return f""".amdhsa_kernel {name}
  .amdhsa_next_free_vgpr {vgpr}
  .amdhsa_next_free_sgpr {sgpr}
  .amdhsa_accum_offset {acc}
  .amdhsa_group_segment_fixed_size 0
  .amdhsa_kernarg_size 96
  .amdhsa_user_sgpr_count 2
  .amdhsa_user_sgpr_kernarg_segment_ptr 1
  .amdhsa_system_sgpr_workgroup_id_x 1
  .amdhsa_float_denorm_mode_32 3
.end_amdhsa_kernel
"""


def srd(a, d, base, off, size):
    if off:
        a(f"s_add_u32 s{d}, s{base}, {off}")
        a(f"s_addc_u32 s{d+1}, s{base+1}, 0")
    else:
        a(f"s_mov_b32 s{d}, s{base}")
        a(f"s_mov_b32 s{d+1}, s{base+1}")
    a(f"s_mov_b32 s{d+2}, {size}")
    a(f"s_mov_b32 s{d+3}, 0x00020000")


N_LN = 2048
N_WGU = 22 * 64
N_WD = 8 * 176
PREP_TASKS = N_LN + N_WGU + N_WD
PREP_WGS = PREP_TASKS // 4


def gen_prep(a):
    name = "prep_kernel"
    kernel_begin(a, name)
    a(f"""
    s_cmp_ge_u32 s2, {PREP_WGS}
    s_cbranch_scc1 L_prep_end
    s_load_dwordx2 s[4:5], s[0:1], {KA_X}
    s_load_dwordx4 s[8:11], s[0:1], {KA_WG}
    s_load_dwordx2 s[12:13], s[0:1], {KA_WDN}
    s_load_dwordx2 s[14:15], s[0:1], {KA_WS}
    v_lshrrev_b32 v1, 6, v0
    v_and_b32 v2, 63, v0
    s_nop 0
    v_readfirstlane_b32 s3, v1
    s_lshl_b32 s16, s2, 2
    s_nop 3
    s_add_u32 s16, s16, s3
    s_waitcnt lgkmcnt(0)
    s_cmp_ge_u32 s16, {N_LN}
    s_cbranch_scc1 L_prep_wgu
    """)
    srd(a, 20, 4, 0, 2048 * 1024)
    srd(a, 24, 14, WS_XN, 2048 * 1024)
    a("""
    s_lshl_b32 s17, s16, 10
    v_lshlrev_b32 v3, 4, v2
    buffer_load_dwordx4 v[4:7], v3, s[20:23], s17 offen
    v_lshlrev_b32 v30, 2, v2
    v_xor_b32 v31, 4, v30
    v_xor_b32 v32, 8, v30
    v_xor_b32 v33, 16, v30
    v_xor_b32 v34, 32, v30
    v_xor_b32 v35, 64, v30
    v_xor_b32 v36, 128, v30
    s_waitcnt vmcnt(0)
    """)
    for i in range(4):
        a(f"v_lshlrev_b32 v{8+2*i}, 16, v{4+i}")
        a(f"v_and_b32 v{9+2*i}, 0xffff0000, v{4+i}")
    a("""
    v_add_f32 v16, v8, v9
    v_add_f32 v17, v10, v11
    v_add_f32 v18, v12, v13
    v_add_f32 v19, v14, v15
    v_add_f32 v16, v16, v17
    v_add_f32 v18, v18, v19
    v_add_f32 v16, v16, v18
    """)
    for r in range(31, 37):
        a(f"""
        ds_bpermute_b32 v17, v{r}, v16
        s_waitcnt lgkmcnt(0)
        v_add_f32 v16, v16, v17
        """)
    a(f"v_mul_f32 v16, 0x{f32bits(1.0/512):08x}, v16")
    for i in range(8):
        a(f"v_sub_f32 v{20+i}, v{8+i}, v16")
    a("v_mul_f32 v17, v20, v20")
    for i in range(1, 8):
        a(f"v_fmac_f32 v17, v{20+i}, v{20+i}")
    for r in range(31, 37):
        a(f"""
        ds_bpermute_b32 v18, v{r}, v17
        s_waitcnt lgkmcnt(0)
        v_add_f32 v17, v17, v18
        """)
    a(f"""
    v_mul_f32 v17, 0x{f32bits(1.0/512):08x}, v17
    v_cvt_pk_bf16_f32 v18, v16, v17
    v_lshlrev_b32 v16, 16, v18
    v_and_b32 v17, 0xffff0000, v18
    v_add_f32 v17, 0x{f32bits(1e-5):08x}, v17
    v_cvt_pk_bf16_f32 v18, v17, v17
    v_lshlrev_b32 v17, 16, v18
    v_sqrt_f32 v17, v17
    s_nop 0
    v_cvt_pk_bf16_f32 v18, v17, v17
    v_lshlrev_b32 v17, 16, v18
    v_rcp_f32 v19, v17
    """)
    for i in range(8):
        a(f"v_sub_f32 v{20+i}, v{8+i}, v16")
    for i in range(4):
        a(f"v_cvt_pk_bf16_f32 v{4+i}, v{20+2*i}, v{21+2*i}")
    for i in range(4):
        a(f"v_lshlrev_b32 v{8+2*i}, 16, v{4+i}")
        a(f"v_and_b32 v{9+2*i}, 0xffff0000, v{4+i}")
    for i in range(8):
        a(f"v_mul_f32 v{20+i}, v{8+i}, v19")
    for i in range(8):
        a(f"v_fma_f32 v{8+i}, -v{20+i}, v17, v{8+i}")
    for i in range(8):
        a(f"v_fmac_f32 v{20+i}, v{8+i}, v19")
    for i in range(4):
        a(f"v_cvt_pk_bf16_f32 v{4+i}, v{20+2*i}, v{21+2*i}")
    a("""
    buffer_store_dwordx4 v[4:7], v3, s[24:27], s17 offen
    s_endpgm
    """)
    a.label("L_prep_wgu")
    a(f"""
    s_cmp_ge_u32 s16, {N_LN + N_WGU}
    s_cbranch_scc1 L_prep_wd
    s_sub_u32 s16, s16, {N_LN}
    s_lshr_b32 s17, s16, 6
    s_and_b32 s18, s16, 63
    """)
    srd(a, 20, 8, 0, 512 * 2752)
    srd(a, 24, 10, 0, 512 * 2752)
    srd(a, 28, 14, WS_WGU, 2816 * 1024)
    a("""
    s_lshl_b32 s19, s17, 6
    v_add_u32 v3, s19, v2
    v_lshlrev_b32 v4, 1, v3
    s_mul_i32 s32, s18, 22016
    """)
    for j in range(8):
        a(f"buffer_load_ushort v{16+j}, v4, s[20:23], s32 offen")
        a(f"buffer_load_ushort v{24+j}, v4, s[24:27], s32 offen")
        if j < 7:
            a("s_add_u32 s32, s32, 2752")
    a("""
    v_lshrrev_b32 v5, 5, v3
    v_lshlrev_b32 v5, 6, v5
    v_and_b32 v6, 31, v3
    v_add_u32 v5, v5, v6
    v_lshlrev_b32 v5, 10, v5
    s_lshl_b32 s33, s18, 4
    v_mov_b32 v7, 1376
    v_cmp_gt_u32 vcc, v7, v3
    s_waitcnt vmcnt(0)
    """)
    for j in range(8):
        a(f"v_lshl_or_b32 v{8+j}, v{17+2*j}, 16, v{16+2*j}")
    for j in range(8):
        a(f"v_cndmask_b32 v{8+j}, 0, v{8+j}, vcc")
    a("""
    buffer_store_dwordx4 v[8:11], v5, s[28:31], s33 offen
    s_add_u32 s33, s33, 32768
    buffer_store_dwordx4 v[12:15], v5, s[28:31], s33 offen
    s_endpgm
    """)
    a.label("L_prep_wd")
    a(f"""
    s_sub_u32 s16, s16, {N_LN + N_WGU}
    s_mul_hi_u32 s17, s16, {((1 << 32) + 175) // 176}
    s_mul_i32 s18, s17, 176
    s_sub_u32 s18, s16, s18
    """)
    srd(a, 20, 12, 0, 1376 * 1024)
    srd(a, 28, 14, WS_B + (4 << 20), 512 * 4096)
    a("""
    s_lshl_b32 s19, s17, 6
    v_add_u32 v3, s19, v2
    v_lshlrev_b32 v4, 1, v3
    s_lshl_b32 s32, s18, 13
    """)
    for j in range(8):
        a(f"buffer_load_ushort v{16+j}, v4, s[20:23], s32 offen")
        if j < 7:
            a("s_add_u32 s32, s32, 1024")
    a("""
    v_lshlrev_b32 v5, 12, v3
    s_lshl_b32 s33, s18, 4
    s_waitcnt vmcnt(0)
    """)
    for j in range(4):
        a(f"v_lshl_or_b32 v{8+j}, v{17+2*j}, 16, v{16+2*j}")
    a("""
    buffer_store_dwordx4 v[8:11], v5, s[28:31], s33 offen
    """)
    a.label("L_prep_end")
    a("s_endpgm")
    return kernel_desc(name, 40)


S_SRDP = 4
S_SRDQ = 8
S_OFFP = 12
S_OFFQ = 13
S_WOFF = 14
S_N = 15
S_NEND = 16
S_JL = 17
S_JEND = 18
S_WAVE = 19
S_WOFFQ = 39


def stamp(a, k):
    if OPT.get("stamp"):
        a(f"s_memrealtime s[{74+2*k}:{75+2*k}]")


def stamp_flush(a, pfx, T, n=8):
    if OPT.get("stamp"):
        a("s_waitcnt lgkmcnt(0)")
        srd(a, 68, 44, (62 << 20) + (0 if pfx == "L_g1" else (1 << 20)), 1 << 20)
        a(f"""
        s_lshl_b32 s72, s2, 3
        s_add_u32 s72, s72, s{S_WAVE}
        s_lshl_b32 s72, s72, 6
        v_mov_b32 v{T}, 0
        """)
        for i in range(2 * n):
            a(f"v_mov_b32 v{T+1}, s{74+i}")
            a(f"buffer_store_dword v{T+1}, v{T}, s[68:71], s72 offen offset:{4*i}")


class Core:
    def __init__(self, MT, NS):
        self.MT, self.NS = MT, NS
        self.BM = 64 * MT
        self.PSZ = self.BM * 128
        self.QSZ = 16384
        self.QBASE = NS * self.PSZ
        self.LDS = self.QBASE + NS * self.QSZ
        self.NPI = self.BM // 32
        self.NDMA = self.NPI + 4
        self.V_LDP = 4
        self.V_LDQ = 12
        self.FS = (MT + 2) * 4
        self.V_FA = 4
        self.V_FB = self.V_FA + self.FS
        self.V_ACC = self.V_FB + self.FS
        self.V_RD = self.V_ACC + MT * 32
        self.rd = {}
        n = 0
        for op, base, ssz, nt in (("P", 0, self.PSZ, MT), ("Q", self.QBASE, self.QSZ, 2)):
            wins = sorted({(base + st * ssz + t * 4096) >> 16 for st in range(NS) for t in range(nt)})
            for w in wins:
                for kk in range(4):
                    self.rd[(op, kk, w)] = self.V_RD + n
                    n += 1
        self.V_TMP = self.V_RD + n

    def acc(self, mt, nt):
        return self.V_ACC + (mt * 2 + nt) * 16

    def accs(self, mt, nt):
        b = self.acc(mt, nt)
        return f"v[{b}:{b+15}]"

    def setup_loader(self, a, rowP_s, rowQ_s, strideP, strideQ):
        t = 20
        rq = self.BM // 4
        a(f"""
        s_sub_u32 s{S_WOFF}, s{S_WAVE}, 4
        s_lshl_b32 s{S_WOFFQ}, s{S_WOFF}, 12
        s_mul_i32 s30, s{S_WOFF}, {rq}
        s_lshl_b32 s31, s{S_WOFF}, 5
        s_mul_i32 s{S_WOFF}, s{S_WOFF}, {rq*128}
        v_lshrrev_b32 v{t}, 3, v1
        v_and_b32 v{t+2}, 7, v1
        v_lshrrev_b32 v{t+3}, 4, v1
        v_xor_b32 v{t+2}, v{t+2}, v{t+3}
        """)
        for (vld, row_s, stride, n, sw) in ((self.V_LDP, rowP_s, strideP, self.NPI, 30), (self.V_LDQ, rowQ_s, strideQ, 4, 31)):
            sh = stride.bit_length() - 1
            assert 1 << sh == stride
            for i in range(n):
                a(f"v_add_u32 v{t+4}, s{row_s}, v{t}")
                a(f"v_add_u32 v{t+4}, s{sw}, v{t+4}")
                if i:
                    a(f"v_add_u32 v{t+4}, {8*i}, v{t+4}")
                a(f"v_lshlrev_b32 v{t+4}, {sh}, v{t+4}")
                if i & 1:
                    a(f"v_xor_b32 v{t+5}, 4, v{t+2}")
                else:
                    a(f"v_mov_b32 v{t+5}, v{t+2}")
                a(f"v_lshlrev_b32 v{t+5}, 4, v{t+5}")
                a(f"v_add_u32 v{vld+i}, v{t+4}, v{t+5}")
                if i & 3:
                    a(f"v_subrev_u32 v{vld+i}, {1024*(i&3)}, v{vld+i}")

    def setup_compute(self, a):
        t = self.V_TMP
        a(f"""
        v_and_b32 v{t}, 31, v1
        v_lshrrev_b32 v{t+1}, 5, v1
        v_lshrrev_b32 v{t+2}, 1, v1
        v_and_b32 v{t+2}, 7, v{t+2}
        v_xor_b32 v{t+2}, v{t+2}, v{t+1}
        v_lshrrev_b32 v{t+3}, 1, v2
        v_mul_u32_u24 v{t+3}, {self.MT*32}, v{t+3}
        v_add_u32 v{t+3}, v{t+3}, v{t}
        v_lshlrev_b32 v{t+3}, 7, v{t+3}
        v_and_b32 v{t+4}, 1, v2
        v_lshlrev_b32 v{t+4}, 6, v{t+4}
        v_add_u32 v{t+4}, v{t+4}, v{t}
        v_lshlrev_b32 v{t+4}, 7, v{t+4}
        """)
        for (op, kk, w), r in self.rd.items():
            a(f"v_xor_b32 v{t+5}, {2*kk}, v{t+2}")
            a(f"v_lshlrev_b32 v{t+5}, 4, v{t+5}")
            a(f"v_add_u32 v{r}, v{t+3 if op == 'P' else t+4}, v{t+5}")
            if w:
                a(f"v_add_u32 v{r}, {w << 16}, v{r}")
        for i in range(self.MT * 32):
            a(f"v_mov_b32 v{self.V_ACC+i}, 0")

    def dma(self, a, stage):
        for i in range(self.NPI):
            if i % 4 == 0:
                a(f"s_add_u32 m0, s{S_WOFF}, {stage*self.PSZ + i*1024}")
                a("s_nop 0")
            a(f"buffer_load_dwordx4 v{self.V_LDP+i}, s[{S_SRDP}:{S_SRDP+3}], s{S_OFFP} offen offset:{1024*(i&3)} lds")
        a(f"s_add_u32 m0, s{S_WOFFQ}, {self.QBASE + stage*self.QSZ}")
        a("s_nop 0")
        for i in range(4):
            a(f"buffer_load_dwordx4 v{self.V_LDQ+i}, s[{S_SRDQ}:{S_SRDQ+3}], s{S_OFFQ} offen offset:{1024*i} lds")

    def reads(self, a, fset, stage, kk):
        for mt in range(self.MT):
            off = stage * self.PSZ + mt * 4096
            a(f"ds_read_b128 v[{fset+4*mt}:{fset+4*mt+3}], v{self.rd[('P', kk, off >> 16)]} offset:{off & 0xffff}")
        for nt in range(2):
            off = self.QBASE + stage * self.QSZ + nt * 4096
            qb = fset + 4 * self.MT + 4 * nt
            a(f"ds_read_b128 v[{qb}:{qb+3}], v{self.rd[('Q', kk, off >> 16)]} offset:{off & 0xffff}")

    def mfma(self, a, fset):
        for mt in range(self.MT):
            for nt in range(2):
                qb = fset + 4 * self.MT + 4 * nt
                if not OPT.get("nomfma"):
                    a(f"v_mfma_f32_32x32x16_bf16 {self.accs(mt,nt)}, v[{fset+4*mt}:{fset+4*mt+3}], v[{qb}:{qb+3}], {self.accs(mt,nt)}")

    def body(self, a, pfx, step_setup, rowP_s, rowQ_s, strideP, strideQ):
        NS = self.NS
        nr = self.MT + 2
        a(f"""
        v_and_b32 v1, 63, v0
        v_lshrrev_b32 v2, 6, v0
        s_nop 0
        v_readfirstlane_b32 s{S_WAVE}, v2
        s_nop 3
        s_mov_b32 s{S_N}, 0
        s_cmp_lt_u32 s{S_WAVE}, 4
        s_cbranch_scc1 {pfx}_compute
        """)
        self.setup_loader(a, rowP_s, rowQ_s, strideP, strideQ)
        for st in range(NS - 1):
            step_setup(a)
            self.dma(a, st)
        a(f"""
        s_waitcnt vmcnt({(NS-2)*self.NDMA})
        s_barrier
        """)
        a.label(f"{pfx}_lloop")
        for u in range(NS):
            a(f"s_cmp_ge_u32 s{S_JL}, s{S_JEND}")
            a(f"s_cbranch_scc1 {pfx}_lskip{u}")
            step_setup(a)
            self.dma(a, (u + NS - 1) % NS)
            a(f"s_waitcnt vmcnt({(NS-2)*self.NDMA})")
            a(f"s_branch {pfx}_lbar{u}")
            a.label(f"{pfx}_lskip{u}")
            a("s_waitcnt vmcnt(0)")
            a.label(f"{pfx}_lbar{u}")
            a("s_barrier")
            a(f"s_add_u32 s{S_N}, s{S_N}, 1")
            a(f"s_cmp_ge_u32 s{S_N}, s{S_NEND}")
            if u < NS - 1:
                a(f"s_cbranch_scc1 {pfx}_ldone")
            else:
                a(f"s_cbranch_scc0 {pfx}_lloop")
        a.label(f"{pfx}_ldone")
        a("s_endpgm")
        a.label(f"{pfx}_compute")
        self.setup_compute(a)
        a("s_barrier")
        if OPT.get("stamp"):
            a("s_memtime s[60:61]")
            a("s_memrealtime s[62:63]")
            a("s_memrealtime s[76:77]")
            a("s_waitcnt lgkmcnt(0)")
        self.reads(a, self.V_FA, 0, 0)
        a.label(f"{pfx}_loop")
        for u in range(NS):
            self.reads(a, self.V_FB, u, 1)
            a(f"s_waitcnt lgkmcnt({nr})")
            self.mfma(a, self.V_FA)
            self.reads(a, self.V_FA, u, 2)
            a(f"s_waitcnt lgkmcnt({nr})")
            self.mfma(a, self.V_FB)
            self.reads(a, self.V_FB, u, 3)
            a(f"s_waitcnt lgkmcnt({nr})")
            self.mfma(a, self.V_FA)
            a("s_waitcnt lgkmcnt(0)")
            a("s_barrier")
            self.reads(a, self.V_FA, (u + 1) % NS, 0)
            self.mfma(a, self.V_FB)
            a(f"s_add_u32 s{S_N}, s{S_N}, 1")
            a(f"s_cmp_ge_u32 s{S_N}, s{S_NEND}")
            if u < NS - 1:
                a(f"s_cbranch_scc1 {pfx}_done")
            else:
                a(f"s_cbranch_scc0 {pfx}_loop")
        a.label(f"{pfx}_done")
        a("s_waitcnt lgkmcnt(0)")
        a("s_nop 15")
        if OPT.get("stamp"):
            T = self.V_TMP
            a("s_memtime s[64:65]")
            a("s_memrealtime s[66:67]")
            a("s_memrealtime s[78:79]")
            a("s_waitcnt lgkmcnt(0)")
            srd(a, 68, 44, (60 << 20) + (0 if pfx == "L_g1" else (1 << 20)), 1 << 20)
            a(f"""
            s_lshl_b32 s72, s2, 3
            s_add_u32 s72, s72, s{S_WAVE}
            s_lshl_b32 s72, s72, 5
            v_mov_b32 v{T}, 0
            """)
            for i in range(8):
                a(f"v_mov_b32 v{T+1}, s{60+i}")
                a(f"buffer_store_dword v{T+1}, v{T}, s[68:71], s72 offen offset:{4*i}")


G1 = None
G1_WGS = 240


def gen_gemm1(a):
    global G1
    C = G1 = Core(4, 3)
    name = "gemm1_kernel"
    kernel_begin(a, name)
    a(f"""
    s_cmp_ge_u32 s2, {G1_WGS}
    s_cbranch_scc1 L_g1_end
    {"s_memrealtime s[74:75]" if OPT.get("stamp") else ""}
    s_load_dwordx4 s[40:43], s[0:1], {KA_WDRE}
    s_load_dwordx2 s[44:45], s[0:1], {KA_WS}
    s_waitcnt lgkmcnt(0)
    s_cmp_ge_u32 s2, 64
    s_cbranch_scc1 L_g1_ffn
    """)
    srd(a, S_SRDP, 44, WS_XN, 2048 * 1024)
    a("""
    s_lshr_b32 s21, s2, 3
    s_and_b32 s24, s2, 7
    s_lshl_b32 s24, s24, 8
    s_cmp_ge_u32 s21, 4
    s_cselect_b64 s[46:47], s[42:43], s[40:41]
    s_and_b32 s25, s21, 3
    s_lshl_b32 s25, s25, 7
    """)
    srd(a, S_SRDQ, 46, 0, 512 * 1024)
    a("s_branch L_g1_main")
    a.label("L_g1_ffn")
    srd(a, S_SRDP, 44, WS_WGU, 2816 * 1024)
    srd(a, S_SRDQ, 44, WS_XN, 2048 * 1024)
    a("""
    s_sub_u32 s23, s2, 64
    s_and_b32 s25, s23, 15
    s_lshl_b32 s25, s25, 7
    s_lshr_b32 s24, s23, 4
    s_lshl_b32 s24, s24, 8
    s_mov_b32 s21, 8
    """)
    a.label("L_g1_main")
    a(f"""
    s_mov_b32 s26, s{S_SRDP+2}
    s_mov_b32 s27, s{S_SRDQ+2}
    s_mov_b32 s{S_JL}, 0
    s_mov_b32 s{S_JEND}, 8
    s_mov_b32 s{S_NEND}, 8
    """)

    def step_setup(a):
        a(f"""
        s_lshl_b32 s{S_OFFP}, s{S_JL}, 7
        s_mov_b32 s{S_OFFQ}, s{S_OFFP}
        s_cmp_lt_u32 s{S_JL}, s{S_JEND}
        s_cselect_b32 s{S_SRDP+2}, s26, 0
        s_cselect_b32 s{S_SRDQ+2}, s27, 0
        s_add_u32 s{S_JL}, s{S_JL}, 1
        """)

    C.body(a, "L_g1", step_setup, 24, 25, 1024, 1024)
    t = C.V_TMP
    a(f"""
    v_and_b32 v{t}, 31, v1
    v_lshrrev_b32 v{t+1}, 5, v1
    s_lshr_b32 s28, s{S_WAVE}, 1
    s_and_b32 s29, s{S_WAVE}, 1
    s_cmp_ge_u32 s21, 8
    s_cbranch_scc1 L_g1_epi_ffn
    """)
    a(f"""
    s_lshr_b32 s30, s21, 2
    s_lshl_b32 s30, s30, 21
    s_add_u32 s30, s30, {WS_B}
    s_add_u32 s32, s44, s30
    s_addc_u32 s33, s45, 0
    s_mov_b32 s34, {512*4096}
    s_mov_b32 s35, 0x00020000
    s_lshl_b32 s30, s29, 6
    s_add_u32 s30, s30, s25
    v_add_u32 v{t+2}, s30, v{t}
    v_lshlrev_b32 v{t+2}, 12, v{t+2}
    s_lshl_b32 s30, s28, 7
    s_add_u32 s30, s30, s24
    v_lshlrev_b32 v{t+3}, 2, v{t+1}
    v_add_u32 v{t+3}, s30, v{t+3}
    v_lshlrev_b32 v{t+3}, 1, v{t+3}
    v_add_u32 v{t+2}, v{t+2}, v{t+3}
    s_cmp_ge_u32 s21, 4
    s_cselect_b32 s31, 0x80008000, 0
    s_mov_b32 s36, 0
    s_mov_b32 s37, 0x20000
    """)
    k = 0
    for mt in range(C.MT):
        for nt in range(2):
            b = C.acc(mt, nt)
            for q in range(4):
                r = t + 4 + 2 * (k % 4)
                k += 1
                a(f"v_cvt_pk_bf16_f32 v{r}, v{b+4*q}, v{b+4*q+1}")
                a(f"v_cvt_pk_bf16_f32 v{r+1}, v{b+4*q+2}, v{b+4*q+3}")
                a(f"v_xor_b32 v{r}, s31, v{r}")
                a(f"v_xor_b32 v{r+1}, s31, v{r+1}")
                a(f"buffer_store_dwordx2 v[{r}:{r+1}], v{t+2}, s[32:35], s{36+nt} offen offset:{mt*64 + q*16}")
    if OPT.get("stamp"):
        stamp(a, 3)
        a("s_waitcnt vmcnt(0)")
        stamp(a, 4)
        stamp_flush(a, "L_g1", t + 4)
    a("s_endpgm")
    a.label("L_g1_epi_ffn")
    srd(a, 32, 44, WS_H, 2048 * 4096)
    c0 = -2.0 * 0.7978845608028654 * 1.4426950408889634
    c1 = c0 * 0.044715
    a(f"""
    s_lshl_b32 s30, s29, 6
    s_add_u32 s30, s30, s25
    v_add_u32 v{t+2}, s30, v{t}
    v_lshlrev_b32 v{t+2}, 12, v{t+2}
    s_lshl_b32 s30, s28, 7
    s_add_u32 s30, s30, s24
    s_lshr_b32 s30, s30, 1
    v_lshlrev_b32 v{t+3}, 2, v{t+1}
    v_add_u32 v{t+3}, s30, v{t+3}
    v_lshlrev_b32 v{t+3}, 1, v{t+3}
    v_add_u32 v{t+2}, v{t+2}, v{t+3}
    s_mov_b32 s36, 0
    s_mov_b32 s37, 0x20000
    v_mov_b32 v{t+4}, 0x{f32bits(c0):08x}
    s_mov_b32 s38, 0x{f32bits(c1):08x}
    """)
    k = 0
    for mb in range(C.MT // 2):
        for nt in range(2):
            bg = C.acc(2 * mb, nt)
            bu = C.acc(2 * mb + 1, nt)
            for q in range(4):
                g = C.V_FA + 16 * (k % 2)
                o = t + 6 + 2 * (k % 2)
                k += 1
                a(f"v_cvt_pk_bf16_f32 v{g+8}, v{bg+4*q}, v{bg+4*q+1}")
                a(f"v_cvt_pk_bf16_f32 v{g+9}, v{bg+4*q+2}, v{bg+4*q+3}")
                a(f"v_cvt_pk_bf16_f32 v{g+10}, v{bu+4*q}, v{bu+4*q+1}")
                a(f"v_cvt_pk_bf16_f32 v{g+11}, v{bu+4*q+2}, v{bu+4*q+3}")
                for p in range(2):
                    a(f"v_lshlrev_b32 v{g+2*p}, 16, v{g+8+p}")
                    a(f"v_and_b32 v{g+2*p+1}, 0xffff0000, v{g+8+p}")
                    a(f"v_lshlrev_b32 v{g+4+2*p}, 16, v{g+10+p}")
                    a(f"v_and_b32 v{g+4+2*p+1}, 0xffff0000, v{g+10+p}")
                for r in range(4):
                    a(f"v_mul_f32 v{g+12+r}, v{g+r}, v{g+r}")
                for r in range(4):
                    a(f"v_fma_f32 v{g+12+r}, v{g+12+r}, s38, v{t+4}")
                for r in range(4):
                    a(f"v_mul_f32 v{g+12+r}, v{g+12+r}, v{g+r}")
                for r in range(4):
                    a(f"v_exp_f32 v{g+12+r}, v{g+12+r}")
                a("s_nop 0")
                for r in range(4):
                    a(f"v_add_f32 v{g+12+r}, 1.0, v{g+12+r}")
                for r in range(4):
                    a(f"v_rcp_f32 v{g+12+r}, v{g+12+r}")
                a("s_nop 0")
                for r in range(4):
                    a(f"v_mul_f32 v{g+12+r}, v{g+12+r}, v{g+r}")
                a(f"v_cvt_pk_bf16_f32 v{g+8}, v{g+12}, v{g+13}")
                a(f"v_cvt_pk_bf16_f32 v{g+9}, v{g+14}, v{g+15}")
                for p in range(2):
                    a(f"v_lshlrev_b32 v{g+12+2*p}, 16, v{g+8+p}")
                    a(f"v_and_b32 v{g+12+2*p+1}, 0xffff0000, v{g+8+p}")
                for r in range(4):
                    a(f"v_mul_f32 v{g+12+r}, v{g+12+r}, v{g+4+r}")
                a(f"v_cvt_pk_bf16_f32 v{o}, v{g+12}, v{g+13}")
                a(f"v_cvt_pk_bf16_f32 v{o+1}, v{g+14}, v{g+15}")
                a(f"buffer_store_dwordx2 v[{o}:{o+1}], v{t+2}, s[32:35], s{36+nt} offen offset:{mb*64 + q*16}")
    if OPT.get("stamp"):
        stamp(a, 3)
        a("s_waitcnt vmcnt(0)")
        stamp(a, 4)
        stamp_flush(a, "L_g1", t + 6)
    a.label("L_g1_end")
    a("s_endpgm")
    return kernel_desc(name, C.V_TMP + 12)


G2 = None
G2_WGS = 256


def gen_gemm2(a):
    global G2
    C = G2 = Core(2, 4)
    name = "gemm2_kernel"
    kernel_begin(a, name)
    a(f"""
    s_cmp_ge_u32 s2, {G2_WGS}
    s_cbranch_scc1 L_g2_end
    {"s_memrealtime s[74:75]" if OPT.get("stamp") else ""}
    s_load_dwordx4 s[40:43], s[0:1], {KA_WSRE}
    s_load_dwordx2 s[44:45], s[0:1], {KA_WS}
    s_load_dwordx2 s[48:49], s[0:1], {KA_X}
    s_load_dwordx4 s[52:55], s[0:1], {KA_OUT}
    s_and_b32 s23, s2, 3
    s_lshr_b32 s20, s2, 2
    s_and_b32 s20, s20, 1
    s_lshl_b32 s20, s20, 3
    s_lshr_b32 s21, s2, 3
    s_and_b32 s22, s21, 7
    s_add_u32 s20, s20, s22
    s_lshr_b32 s22, s21, 3
    s_mul_i32 s{S_JL}, s23, 86
    s_add_u32 s{S_JEND}, s{S_JL}, 86
    s_lshr_b32 s{S_JL}, s{S_JL}, 2
    s_lshr_b32 s{S_JEND}, s{S_JEND}, 2
    s_sub_u32 s{S_NEND}, s{S_JEND}, s{S_JL}
    s_lshl_b32 s24, s22, 7
    s_lshl_b32 s25, s20, 7
    s_waitcnt lgkmcnt(0)
    """)
    srd(a, S_SRDP, 44, WS_B, 3 * 512 * 4096)
    a(f"""
    s_add_u32 s46, s44, {WS_H}
    s_addc_u32 s47, s45, 0
    s_mov_b32 s{S_SRDQ+3}, 0x00020000
    """)

    def step_setup(a):
        a(f"""
        s_lshr_b32 s26, s{S_JL}, 5
        s_and_b32 s{S_OFFQ}, s{S_JL}, 31
        s_lshl_b32 s{S_OFFQ}, s{S_OFFQ}, 7
        s_lshl_b32 s27, s26, 21
        s_add_u32 s{S_OFFP}, s{S_OFFQ}, s27
        s_cmp_eq_u32 s26, 0
        s_cselect_b64 s[{S_SRDQ}:{S_SRDQ+1}], s[40:41], s[42:43]
        s_cmp_ge_u32 s26, 2
        s_cselect_b64 s[{S_SRDQ}:{S_SRDQ+1}], s[46:47], s[{S_SRDQ}:{S_SRDQ+1}]
        s_cmp_lt_u32 s{S_JL}, s{S_JEND}
        s_cselect_b32 s{S_SRDP+2}, {3*512*4096}, 0
        s_cselect_b32 s{S_SRDQ+2}, {2048*4096}, 0
        s_add_u32 s{S_JL}, s{S_JL}, 1
        """)

    C.body(a, "L_g2", step_setup, 24, 25, 4096, 4096)
    t = C.V_TMP
    srd(a, 32, 44, WS_PART, 64 * 16 * 8192)
    a(f"""
    s_lshl_b32 s28, s20, 2
    s_add_u32 s28, s28, s22
    s_lshl_b32 s31, s{S_WAVE}, 11
    v_lshlrev_b32 v{t}, 4, v1
    """)
    for tl in range(4):
        a(f"""
        s_cmp_eq_u32 s23, {tl}
        s_cbranch_scc1 L_g2_pub{tl}
        s_lshl_b32 s30, s28, 2
        s_add_u32 s30, s30, {tl}
        s_lshl_b32 s30, s30, 2
        s_add_u32 s30, s30, s23
        s_lshl_b32 s30, s30, 13
        s_add_u32 s30, s30, s31
        """)
        b = C.V_ACC + tl * 16
        r = t + 4 + 8 * (tl & 1)
        for i in range(8):
            a(f"v_cvt_pk_bf16_f32 v{r+i}, v{b+2*i}, v{b+2*i+1}")
        a(f"buffer_store_dwordx4 v[{r}:{r+3}], v{t}, s[32:35], s30 offen sc1")
        a(f"buffer_store_dwordx4 v[{r+4}:{r+7}], v{t}, s[32:35], s30 offen offset:1024 sc1")
        a.label(f"L_g2_pub{tl}")
    srd(a, 56, 54, 0, 256)
    a("s_waitcnt vmcnt(0)")
    stamp(a, 3)
    a(f"""
    s_barrier
    s_cmp_lg_u32 s{S_WAVE}, 0
    s_cbranch_scc1 L_g2_wait
    s_lshl_b32 s29, s28, 2
    v_mov_b32 v{t+1}, 1
    v_mov_b32 v{t+2}, 0
    s_mov_b64 s[60:61], exec
    s_mov_b64 exec, 1
    buffer_atomic_add v{t+1}, v{t+2}, s[56:59], s29 offen
    """)
    a.label("L_g2_spin")
    a(f"""
    buffer_load_dword v{t+1}, v{t+2}, s[56:59], s29 offen sc1
    s_waitcnt vmcnt(0)
    v_readfirstlane_b32 s30, v{t+1}
    s_nop 3
    s_cmp_ge_u32 s30, 4
    s_cbranch_scc1 L_g2_spun
    s_sleep 1
    s_branch L_g2_spin
    """)
    a.label("L_g2_spun")
    a("s_mov_b64 exec, s[60:61]")
    a.label("L_g2_wait")
    a("s_barrier")
    stamp(a, 4)
    srd(a, 60, 48, 0, 2048 * 1024)
    srd(a, 64, 52, 0, 2048 * 1024)
    L = t + 4
    X = L + 24
    a(f"""
    s_and_b32 s36, s{S_WAVE}, 1
    s_lshl_b32 s36, s36, 1
    s_and_b32 s37, s23, 1
    s_add_u32 s36, s36, s37
    s_lshl_b32 s36, s36, 5
    s_add_u32 s36, s36, s25
    s_lshr_b32 s37, s{S_WAVE}, 1
    s_lshl_b32 s37, s37, 1
    s_lshr_b32 s38, s23, 1
    s_add_u32 s37, s37, s38
    s_lshl_b32 s37, s37, 5
    s_add_u32 s37, s37, s24
    v_and_b32 v{t+1}, 31, v1
    v_add_u32 v{t+1}, s36, v{t+1}
    v_lshlrev_b32 v{t+1}, 10, v{t+1}
    v_lshrrev_b32 v{t+2}, 5, v1
    v_lshlrev_b32 v{t+2}, 2, v{t+2}
    v_add_u32 v{t+2}, s37, v{t+2}
    v_lshlrev_b32 v{t+2}, 1, v{t+2}
    v_add_u32 v{t+1}, v{t+1}, v{t+2}
    s_lshl_b32 s38, s28, 2
    s_add_u32 s38, s38, s23
    s_lshl_b32 s38, s38, 2
    """)
    for i in range(1, 4):
        a(f"""
        s_add_u32 s30, s23, {i}
        s_and_b32 s30, s30, 3
        s_add_u32 s30, s30, s38
        s_lshl_b32 s30, s30, 13
        s_add_u32 s30, s30, s31
        """)
        r = L + (i - 1) * 8
        a(f"buffer_load_dwordx4 v[{r}:{r+3}], v{t}, s[32:35], s30 offen sc1")
        a(f"buffer_load_dwordx4 v[{r+4}:{r+7}], v{t}, s[32:35], s30 offen offset:1024 sc1")
    for q in range(4):
        a(f"buffer_load_dwordx2 v[{X+2*q}:{X+2*q+1}], v{t+1}, s[60:63], 0 offen offset:{q*16}")
    for tl in range(3):
        a(f"s_cmp_eq_u32 s23, {tl}")
        a(f"s_cbranch_scc1 L_g2_fin{tl}")
    for tl in (3, 0, 1, 2):
        if tl != 3:
            a.label(f"L_g2_fin{tl}")
        a("s_waitcnt vmcnt(0)")
        b = C.V_ACC + tl * 16
        for src in list(range(3)) + ["x"]:
            for i in range(8):
                rr = (L + src * 8 + i) if src != "x" else X + i
                a(f"v_lshlrev_b32 v{t+2}, 16, v{rr}")
                a(f"v_and_b32 v{t+3}, 0xffff0000, v{rr}")
                a(f"v_add_f32 v{b+2*i}, v{b+2*i}, v{t+2}")
                a(f"v_add_f32 v{b+2*i+1}, v{b+2*i+1}, v{t+3}")
        for q in range(4):
            a(f"v_cvt_pk_bf16_f32 v{X+2*q}, v{b+4*q}, v{b+4*q+1}")
            a(f"v_cvt_pk_bf16_f32 v{X+2*q+1}, v{b+4*q+2}, v{b+4*q+3}")
            a(f"buffer_store_dwordx2 v[{X+2*q}:{X+2*q+1}], v{t+1}, s[64:67], 0 offen offset:{q*16}")
        if OPT.get("stamp"):
            a("s_waitcnt vmcnt(0)")
            stamp(a, 5)
            stamp_flush(a, "L_g2", t + 2)
        a("s_endpgm")
    a.label("L_g2_end")
    a("s_endpgm")
    return kernel_desc(name, X + 8)


def main():
    global ARGS
    ARGS = [x for x in sys.argv[1:] if "=" not in x]
    for x in sys.argv[1:]:
        if "=" in x:
            k, v = x.split("=")
            OPT[k] = int(v)
    hdr = open("cdna_kernels/" + NAME + ".s.ref").read().split("\n")
    top = [l for l in hdr if l.startswith(";") and "@launch" not in l and "Override" not in l and "grid=ceil" not in l]
    a = Asm()
    descs = []
    a.raw('.amdgcn_target "amdgcn-amd-amdhsa--gfx950"')
    a.raw(".text")
    descs.append(gen_prep(a))
    descs.append(gen_gemm1(a))
    descs.append(gen_gemm2(a))
    out = "\n".join(top) + "\n"
    out += f"; @launch kernel=prep_kernel grid=({PREP_WGS},1,1) block=(256,1,1) lds=0\n"
    out += f"; @launch kernel=gemm1_kernel grid=({G1_WGS},1,1) block=(512,1,1) lds={G1.LDS}\n"
    out += f"; @launch kernel=gemm2_kernel grid=({G2_WGS},1,1) block=(512,1,1) lds={G2.LDS}\n"
    out += a.text()
    out += '.section .rodata,"a"\n'
    for d in descs:
        out += ".p2align 6\n" + d
    path = ARGS[0] if ARGS else "cdna_kernels/" + NAME + ".s"
    open(path, "w").write(out)


if __name__ == "__main__":
    main()
```

```python
import struct
import sys

NAME = "parallel_sum__spectral_fnet__geglu_ffn__prompt"
OPT = {}

WS_XN = 0
WS_WGU = 2 << 20
WS_B = 8 << 20
WS_H = 16 << 20
WS_PART = 32 << 20
WS_SIZE = 268435456

KA_X, KA_WSRE, KA_WSIM, KA_WDRE, KA_WDIM, KA_BX, KA_WG, KA_WU, KA_WDN, KA_OUT, KA_DBG, KA_WS = [8 * i for i in range(12)]


def f32bits(x):
    return struct.unpack("<I", struct.pack("<f", x))[0]


class Asm:
    def __init__(self):
        self.lines = []

    def __call__(self, s):
        for ln in s.strip("\n").split("\n"):
            self.lines.append("    " + ln.strip())

    def label(self, s):
        self.lines.append(s + ":")

    def raw(self, s):
        self.lines.append(s)

    def text(self):
        return "\n".join(self.lines) + "\n"


def kernel_begin(a, name):
    a.raw(f".globl {name}")
    a.raw(".p2align 8")
    a.raw(f".type {name},@function")
    a.label(name)


def kernel_desc(name, vgpr, sgpr=96):
    acc = (vgpr + 3) // 4 * 4
    return f""".amdhsa_kernel {name}
  .amdhsa_next_free_vgpr {vgpr}
  .amdhsa_next_free_sgpr {sgpr}
  .amdhsa_accum_offset {acc}
  .amdhsa_group_segment_fixed_size 0
  .amdhsa_kernarg_size 96
  .amdhsa_user_sgpr_count 2
  .amdhsa_user_sgpr_kernarg_segment_ptr 1
  .amdhsa_system_sgpr_workgroup_id_x 1
  .amdhsa_float_denorm_mode_32 3
.end_amdhsa_kernel
"""


def srd(a, d, base, off, size):
    if off:
        a(f"s_add_u32 s{d}, s{base}, {off}")
        a(f"s_addc_u32 s{d+1}, s{base+1}, 0")
    else:
        a(f"s_mov_b32 s{d}, s{base}")
        a(f"s_mov_b32 s{d+1}, s{base+1}")
    a(f"s_mov_b32 s{d+2}, {size}")
    a(f"s_mov_b32 s{d+3}, 0x00020000")


N_LN = 2048
N_WGU = 22 * 64
N_WD = 8 * 176
N_PF = 0
PREP_WGS = 0


def gen_prep(a):
    global N_PF, PREP_WGS
    N_PF = 1024 if OPT.get("pf", 2) == 1 else 0
    PREP_WGS = (N_LN + N_WGU + N_WD + N_PF) // 4
    name = "prep_kernel"
    kernel_begin(a, name)
    a(f"""
    s_cmp_ge_u32 s2, {PREP_WGS}
    s_cbranch_scc1 L_prep_end
    s_load_dwordx2 s[4:5], s[0:1], {KA_X}
    s_load_dwordx4 s[8:11], s[0:1], {KA_WG}
    s_load_dwordx2 s[12:13], s[0:1], {KA_WDN}
    s_load_dwordx2 s[14:15], s[0:1], {KA_WS}
    v_lshrrev_b32 v1, 6, v0
    v_and_b32 v2, 63, v0
    s_nop 0
    v_readfirstlane_b32 s3, v1
    s_lshl_b32 s16, s2, 2
    s_nop 3
    s_add_u32 s16, s16, s3
    s_waitcnt lgkmcnt(0)
    s_cmp_lt_u32 s16, {N_PF}
    s_cbranch_scc1 L_prep_pf
    s_sub_u32 s16, s16, {N_PF}
    s_cmp_ge_u32 s16, {N_LN}
    s_cbranch_scc1 L_prep_wgu
    """)
    srd(a, 20, 4, 0, 2048 * 1024)
    srd(a, 24, 14, WS_XN, 2048 * 1024)
    a("""
    s_lshl_b32 s17, s16, 10
    v_lshlrev_b32 v3, 4, v2
    buffer_load_dwordx4 v[4:7], v3, s[20:23], s17 offen
    v_lshlrev_b32 v30, 2, v2
    v_xor_b32 v31, 4, v30
    v_xor_b32 v32, 8, v30
    v_xor_b32 v33, 16, v30
    v_xor_b32 v34, 32, v30
    v_xor_b32 v35, 64, v30
    v_xor_b32 v36, 128, v30
    s_waitcnt vmcnt(0)
    """)
    for i in range(4):
        a(f"v_lshlrev_b32 v{8+2*i}, 16, v{4+i}")
        a(f"v_and_b32 v{9+2*i}, 0xffff0000, v{4+i}")
    a("""
    v_add_f32 v16, v8, v9
    v_add_f32 v17, v10, v11
    v_add_f32 v18, v12, v13
    v_add_f32 v19, v14, v15
    v_add_f32 v16, v16, v17
    v_add_f32 v18, v18, v19
    v_add_f32 v16, v16, v18
    """)
    for r in range(31, 37):
        a(f"""
        ds_bpermute_b32 v17, v{r}, v16
        s_waitcnt lgkmcnt(0)
        v_add_f32 v16, v16, v17
        """)
    a(f"v_mul_f32 v16, 0x{f32bits(1.0/512):08x}, v16")
    for i in range(8):
        a(f"v_sub_f32 v{20+i}, v{8+i}, v16")
    a("v_mul_f32 v17, v20, v20")
    for i in range(1, 8):
        a(f"v_fmac_f32 v17, v{20+i}, v{20+i}")
    for r in range(31, 37):
        a(f"""
        ds_bpermute_b32 v18, v{r}, v17
        s_waitcnt lgkmcnt(0)
        v_add_f32 v17, v17, v18
        """)
    a(f"""
    v_mul_f32 v17, 0x{f32bits(1.0/512):08x}, v17
    v_cvt_pk_bf16_f32 v18, v16, v17
    v_lshlrev_b32 v16, 16, v18
    v_and_b32 v17, 0xffff0000, v18
    v_add_f32 v17, 0x{f32bits(1e-5):08x}, v17
    v_cvt_pk_bf16_f32 v18, v17, v17
    v_lshlrev_b32 v17, 16, v18
    v_sqrt_f32 v17, v17
    s_nop 0
    v_cvt_pk_bf16_f32 v18, v17, v17
    v_lshlrev_b32 v17, 16, v18
    v_rcp_f32 v19, v17
    """)
    for i in range(8):
        a(f"v_sub_f32 v{20+i}, v{8+i}, v16")
    for i in range(4):
        a(f"v_cvt_pk_bf16_f32 v{4+i}, v{20+2*i}, v{21+2*i}")
    for i in range(4):
        a(f"v_lshlrev_b32 v{8+2*i}, 16, v{4+i}")
        a(f"v_and_b32 v{9+2*i}, 0xffff0000, v{4+i}")
    for i in range(8):
        a(f"v_mul_f32 v{20+i}, v{8+i}, v19")
    for i in range(8):
        a(f"v_fma_f32 v{8+i}, -v{20+i}, v17, v{8+i}")
    for i in range(8):
        a(f"v_fmac_f32 v{20+i}, v{8+i}, v19")
    for i in range(4):
        a(f"v_cvt_pk_bf16_f32 v{4+i}, v{20+2*i}, v{21+2*i}")
    a("""
    buffer_store_dwordx4 v[4:7], v3, s[24:27], s17 offen
    s_endpgm
    """)
    a.label("L_prep_wgu")
    a(f"""
    s_cmp_ge_u32 s16, {N_LN + N_WGU}
    s_cbranch_scc1 L_prep_wd
    s_sub_u32 s16, s16, {N_LN}
    s_lshr_b32 s17, s16, 6
    s_and_b32 s18, s16, 63
    """)
    srd(a, 20, 8, 0, 512 * 2752)
    srd(a, 24, 10, 0, 512 * 2752)
    srd(a, 28, 14, WS_WGU, 2816 * 1024)
    a("""
    s_lshl_b32 s19, s17, 6
    v_add_u32 v3, s19, v2
    v_lshlrev_b32 v4, 1, v3
    s_mul_i32 s32, s18, 22016
    """)
    for j in range(8):
        a(f"buffer_load_ushort v{16+j}, v4, s[20:23], s32 offen")
        a(f"buffer_load_ushort v{24+j}, v4, s[24:27], s32 offen")
        if j < 7:
            a("s_add_u32 s32, s32, 2752")
    a("""
    v_lshrrev_b32 v5, 5, v3
    v_lshlrev_b32 v5, 6, v5
    v_and_b32 v6, 31, v3
    v_add_u32 v5, v5, v6
    v_lshlrev_b32 v5, 10, v5
    s_lshl_b32 s33, s18, 4
    v_mov_b32 v7, 1376
    v_cmp_gt_u32 vcc, v7, v3
    s_waitcnt vmcnt(0)
    """)
    for j in range(8):
        a(f"v_lshl_or_b32 v{8+j}, v{17+2*j}, 16, v{16+2*j}")
    for j in range(8):
        a(f"v_cndmask_b32 v{8+j}, 0, v{8+j}, vcc")
    a("""
    buffer_store_dwordx4 v[8:11], v5, s[28:31], s33 offen
    s_add_u32 s33, s33, 32768
    buffer_store_dwordx4 v[12:15], v5, s[28:31], s33 offen
    s_endpgm
    """)
    a.label("L_prep_wd")
    a(f"""
    s_sub_u32 s16, s16, {N_LN + N_WGU}
    s_mul_hi_u32 s17, s16, {((1 << 32) + 175) // 176}
    s_mul_i32 s18, s17, 176
    s_sub_u32 s18, s16, s18
    """)
    srd(a, 20, 12, 0, 1376 * 1024)
    srd(a, 28, 14, WS_B + (4 << 20), 512 * 4096)
    a("""
    s_lshl_b32 s19, s17, 6
    v_add_u32 v3, s19, v2
    v_lshlrev_b32 v4, 1, v3
    s_lshl_b32 s32, s18, 13
    """)
    for j in range(8):
        a(f"buffer_load_ushort v{16+j}, v4, s[20:23], s32 offen")
        if j < 7:
            a("s_add_u32 s32, s32, 1024")
    a("""
    v_lshlrev_b32 v5, 12, v3
    s_lshl_b32 s33, s18, 4
    s_waitcnt vmcnt(0)
    """)
    for j in range(4):
        a(f"v_lshl_or_b32 v{8+j}, v{17+2*j}, 16, v{16+2*j}")
    a("""
    buffer_store_dwordx4 v[8:11], v5, s[28:31], s33 offen
    """)
    a("s_endpgm")
    a.label("L_prep_pf")
    a(f"""
    s_load_dwordx4 s[20:23], s[0:1], {KA_WSRE}
    s_lshl_b32 s17, s16, 13
    v_lshlrev_b32 v3, 4, v2
    s_waitcnt lgkmcnt(0)
    """)
    srd(a, 24, 20, 0, 2048 * 4096)
    srd(a, 28, 22, 0, 2048 * 4096)
    for i in range(8):
        a(f"buffer_load_dwordx4 v[{4+4*(i%4)}:{7+4*(i%4)}], v3, s[24:27], s17 offen")
        a(f"buffer_load_dwordx4 v[{20+4*(i%4)}:{23+4*(i%4)}], v3, s[28:31], s17 offen")
        a("s_add_u32 s17, s17, 1024")
    a.label("L_prep_end")
    a("s_endpgm")
    return kernel_desc(name, 40)


S_SRDP = 4
S_SRDQ = 8
S_OFFP = 12
S_OFFQ = 13
S_WOFF = 14
S_N = 15
S_NEND = 16
S_JL = 17
S_JEND = 18
S_WAVE = 19
S_WOFFQ = 39


def stamp(a, k):
    if OPT.get("stamp"):
        a(f"s_memrealtime s[{74+2*k}:{75+2*k}]")


def stamp_flush(a, pfx, T, n=8):
    if OPT.get("stamp"):
        a("s_waitcnt lgkmcnt(0)")
        srd(a, 68, 44, (62 << 20) + (0 if pfx == "L_g1" else (1 << 20)), 1 << 20)
        a(f"""
        s_lshl_b32 s72, s2, 3
        s_add_u32 s72, s72, s{S_WAVE}
        s_lshl_b32 s72, s72, 6
        v_mov_b32 v{T}, 0
        """)
        for i in range(2 * n):
            a(f"v_mov_b32 v{T+1}, s{74+i}")
            a(f"buffer_store_dword v{T+1}, v{T}, s[68:71], s72 offen offset:{4*i}")


class Core:
    def __init__(self, MT, NS):
        self.MT, self.NS = MT, NS
        self.BM = 64 * MT
        self.PSZ = self.BM * 128
        self.QSZ = 16384
        self.QBASE = NS * self.PSZ
        self.LDS = self.QBASE + NS * self.QSZ
        self.NPI = self.BM // 32
        self.NDMA = self.NPI + 4
        self.V_LDP = 4
        self.V_LDQ = 12
        self.M16 = bool(OPT.get("m16", 0))
        self.V_FA = 4
        if self.M16:
            self.PA = 4
            self.PB = self.PA + MT * 4
            self.QA = self.PB + MT * 4
            self.QB = self.QA + 16
            self.V_ACC = self.QB + 16
            nkk, fr = 2, 2048
            nP, nQ = 2 * MT, 4
        else:
            self.FS = (MT + 2) * 4
            self.V_FB = self.V_FA + self.FS
            self.V_ACC = self.V_FB + self.FS
            nkk, fr = 4, 4096
            nP, nQ = MT, 2
        self.V_RD = self.V_ACC + MT * 32
        self.rd = {}
        n = 0
        for op, base, ssz, nt in (("P", 0, self.PSZ, nP), ("Q", self.QBASE, self.QSZ, nQ)):
            wins = sorted({(base + st * ssz + t * fr) >> 16 for st in range(NS) for t in range(nt)})
            for w in wins:
                for kk in range(nkk):
                    self.rd[(op, kk, w)] = self.V_RD + n
                    n += 1
        self.V_TMP = (self.V_RD + n + 1) // 2 * 2
        self.LN_MASK = 15 if self.M16 else 31
        self.LM_SHIFT = 4 if self.M16 else 5

    def acc(self, mt, nt):
        return self.V_ACC + (mt * 2 + nt) * 16

    def accs(self, mt, nt):
        b = self.acc(mt, nt)
        return f"v[{b}:{b+15}]"

    def acc16(self, mi, ni):
        return self.V_ACC + ((mi >> 1) * 2 + (ni >> 1)) * 16 + ((mi & 1) * 2 + (ni & 1)) * 4

    def quads(self):
        out = []
        if self.M16:
            for mi in range(2 * self.MT):
                for ni in range(4):
                    out.append((self.acc16(mi, ni), mi * 16, ni * 16))
        else:
            for mt in range(self.MT):
                for nt in range(2):
                    for q in range(4):
                        out.append((self.acc(mt, nt) + 4 * q, mt * 32 + 8 * q, nt * 32))
        return out

    def setup_loader(self, a, rowP_s, rowQ_s, strideP, strideQ):
        t = 20
        rq = self.BM // 4
        a(f"""
        s_sub_u32 s{S_WOFF}, s{S_WAVE}, 4
        s_lshl_b32 s{S_WOFFQ}, s{S_WOFF}, 12
        s_mul_i32 s30, s{S_WOFF}, {rq}
        s_lshl_b32 s31, s{S_WOFF}, 5
        s_mul_i32 s{S_WOFF}, s{S_WOFF}, {rq*128}
        v_lshrrev_b32 v{t}, 3, v1
        v_and_b32 v{t+2}, 7, v1
        v_lshrrev_b32 v{t+3}, 4, v1
        v_xor_b32 v{t+2}, v{t+2}, v{t+3}
        """)
        for (vld, row_s, stride, n, sw) in ((self.V_LDP, rowP_s, strideP, self.NPI, 30), (self.V_LDQ, rowQ_s, strideQ, 4, 31)):
            sh = stride.bit_length() - 1
            assert 1 << sh == stride
            for i in range(n):
                a(f"v_add_u32 v{t+4}, s{row_s}, v{t}")
                a(f"v_add_u32 v{t+4}, s{sw}, v{t+4}")
                if i:
                    a(f"v_add_u32 v{t+4}, {8*i}, v{t+4}")
                a(f"v_lshlrev_b32 v{t+4}, {sh}, v{t+4}")
                if i & 1:
                    a(f"v_xor_b32 v{t+5}, 4, v{t+2}")
                else:
                    a(f"v_mov_b32 v{t+5}, v{t+2}")
                a(f"v_lshlrev_b32 v{t+5}, 4, v{t+5}")
                a(f"v_add_u32 v{vld+i}, v{t+4}, v{t+5}")
                if i & 3:
                    a(f"v_subrev_u32 v{vld+i}, {1024*(i&3)}, v{vld+i}")

    def setup_compute(self, a):
        t = self.V_TMP
        if self.M16:
            a(f"""
            v_and_b32 v{t}, 15, v1
            v_lshrrev_b32 v{t+1}, 4, v1
            v_lshrrev_b32 v{t+2}, 1, v{t}
            v_xor_b32 v{t+2}, v{t+2}, v{t+1}
            """)
        else:
            a(f"""
            v_and_b32 v{t}, 31, v1
            v_lshrrev_b32 v{t+1}, 5, v1
            v_lshrrev_b32 v{t+2}, 1, v1
            v_and_b32 v{t+2}, 7, v{t+2}
            v_xor_b32 v{t+2}, v{t+2}, v{t+1}
            """)
        a(f"""
        v_lshrrev_b32 v{t+3}, 1, v2
        v_mul_u32_u24 v{t+3}, {self.MT*32}, v{t+3}
        v_add_u32 v{t+3}, v{t+3}, v{t}
        v_lshlrev_b32 v{t+3}, 7, v{t+3}
        v_and_b32 v{t+4}, 1, v2
        v_lshlrev_b32 v{t+4}, 6, v{t+4}
        v_add_u32 v{t+4}, v{t+4}, v{t}
        v_lshlrev_b32 v{t+4}, 7, v{t+4}
        """)
        for (op, kk, w), r in self.rd.items():
            a(f"v_xor_b32 v{t+5}, {(4 if self.M16 else 2)*kk}, v{t+2}")
            a(f"v_lshlrev_b32 v{t+5}, 4, v{t+5}")
            a(f"v_add_u32 v{r}, v{t+3 if op == 'P' else t+4}, v{t+5}")
            if w:
                a(f"v_add_u32 v{r}, {w << 16}, v{r}")
        for i in range(self.MT * 32):
            a(f"v_mov_b32 v{self.V_ACC+i}, 0")

    def rdP16(self, a, dst, stage, kk, mh):
        for j in range(self.MT):
            off = stage * self.PSZ + (mh * self.MT + j) * 2048
            a(f"ds_read_b128 v[{dst+4*j}:{dst+4*j+3}], v{self.rd[('P', kk, off >> 16)]} offset:{off & 0xffff}")

    def rdQ16(self, a, dst, stage, kk):
        for j in range(4):
            off = self.QBASE + stage * self.QSZ + j * 2048
            a(f"ds_read_b128 v[{dst+4*j}:{dst+4*j+3}], v{self.rd[('Q', kk, off >> 16)]} offset:{off & 0xffff}")

    def mfma16(self, a, P, Q, mh):
        for j in range(self.MT):
            for ni in range(4):
                r = self.acc16(mh * self.MT + j, ni)
                a(f"v_mfma_f32_16x16x32_bf16 v[{r}:{r+3}], v[{P+4*j}:{P+4*j+3}], v[{Q+4*ni}:{Q+4*ni+3}], v[{r}:{r+3}]")

    def dma(self, a, stage):
        for i in range(self.NPI):
            if i % 4 == 0:
                a(f"s_add_u32 m0, s{S_WOFF}, {stage*self.PSZ + i*1024}")
                a("s_nop 0")
            a(f"buffer_load_dwordx4 v{self.V_LDP+i}, s[{S_SRDP}:{S_SRDP+3}], s{S_OFFP} offen offset:{1024*(i&3)} lds")
        a(f"s_add_u32 m0, s{S_WOFFQ}, {self.QBASE + stage*self.QSZ}")
        a("s_nop 0")
        for i in range(4):
            a(f"buffer_load_dwordx4 v{self.V_LDQ+i}, s[{S_SRDQ}:{S_SRDQ+3}], s{S_OFFQ} offen offset:{1024*i} lds")

    def reads(self, a, fset, stage, kk):
        for mt in range(self.MT):
            off = stage * self.PSZ + mt * 4096
            a(f"ds_read_b128 v[{fset+4*mt}:{fset+4*mt+3}], v{self.rd[('P', kk, off >> 16)]} offset:{off & 0xffff}")
        for nt in range(2):
            off = self.QBASE + stage * self.QSZ + nt * 4096
            qb = fset + 4 * self.MT + 4 * nt
            a(f"ds_read_b128 v[{qb}:{qb+3}], v{self.rd[('Q', kk, off >> 16)]} offset:{off & 0xffff}")

    def mfma(self, a, fset):
        for mt in range(self.MT):
            for nt in range(2):
                qb = fset + 4 * self.MT + 4 * nt
                if not OPT.get("nomfma"):
                    a(f"v_mfma_f32_32x32x16_bf16 {self.accs(mt,nt)}, v[{fset+4*mt}:{fset+4*mt+3}], v[{qb}:{qb+3}], {self.accs(mt,nt)}")

    def body(self, a, pfx, step_setup, rowP_s, rowQ_s, strideP, strideQ, tail=None, pre=None, filler=None):
        NS = self.NS
        nr = self.MT + 2
        a(f"""
        v_and_b32 v1, 63, v0
        v_lshrrev_b32 v2, 6, v0
        s_nop 0
        v_readfirstlane_b32 s{S_WAVE}, v2
        s_nop 3
        s_mov_b32 s{S_N}, 0
        s_cmp_lt_u32 s{S_WAVE}, 4
        s_cbranch_scc1 {pfx}_compute
        """)

        self.setup_loader(a, rowP_s, rowQ_s, strideP, strideQ)
        for st in range(NS - 1):
            step_setup(a)
            self.dma(a, st)
        a(f"""
        s_waitcnt vmcnt({(NS-2)*self.NDMA})
        s_barrier
        """)
        a.label(f"{pfx}_lloop")
        for u in range(NS):
            a(f"s_cmp_ge_u32 s{S_JL}, s{S_JEND}")
            a(f"s_cbranch_scc1 {pfx}_lskip{u}")
            step_setup(a)
            self.dma(a, (u + NS - 1) % NS)
            a(f"s_waitcnt vmcnt({(NS-2)*self.NDMA})")
            a(f"s_branch {pfx}_lbar{u}")
            a.label(f"{pfx}_lskip{u}")
            a("s_waitcnt vmcnt(0)")
            a.label(f"{pfx}_lbar{u}")
            a("s_barrier")
            a(f"s_add_u32 s{S_N}, s{S_N}, 1")
            a(f"s_cmp_ge_u32 s{S_N}, s{S_NEND}")
            if u < NS - 1:
                a(f"s_cbranch_scc1 {pfx}_ldone")
            else:
                a(f"s_cbranch_scc0 {pfx}_lloop")
        a.label(f"{pfx}_ldone")
        a("s_endpgm")
        a.label(f"{pfx}_compute")
        self.setup_compute(a)
        if pre:
            pre(a)
        a("s_barrier")
        if OPT.get("stamp"):
            a("s_memtime s[60:61]")
            a("s_memrealtime s[62:63]")
            a("s_memrealtime s[76:77]")
            a("s_waitcnt lgkmcnt(0)")
        MT = self.MT
        if self.M16:
            self.rdP16(a, self.PA, 0, 0, 0)
            self.rdQ16(a, self.QA, 0, 0)
        else:
            self.reads(a, self.V_FA, 0, 0)
        a.label(f"{pfx}_loop")
        for u in range(NS):
            if self.M16:
                self.rdP16(a, self.PB, u, 0, 1)
                a(f"s_waitcnt lgkmcnt({MT})")
                self.mfma16(a, self.PA, self.QA, 0)
                if filler:
                    filler(a)
                self.rdP16(a, self.PA, u, 1, 0)
                self.rdQ16(a, self.QB, u, 1)
                a(f"s_waitcnt lgkmcnt({MT+4})")
                self.mfma16(a, self.PB, self.QA, 1)
                self.rdP16(a, self.PB, u, 1, 1)
                a(f"s_waitcnt lgkmcnt({MT})")
                self.mfma16(a, self.PA, self.QB, 0)
                if filler:
                    filler(a)
                a("s_waitcnt lgkmcnt(0)")
                a("s_barrier")
                self.rdP16(a, self.PA, (u + 1) % NS, 0, 0)
                self.rdQ16(a, self.QA, (u + 1) % NS, 0)
                self.mfma16(a, self.PB, self.QB, 1)
            else:
                self.reads(a, self.V_FB, u, 1)
                a(f"s_waitcnt lgkmcnt({nr})")
                self.mfma(a, self.V_FA)
                if filler:
                    filler(a)
                self.reads(a, self.V_FA, u, 2)
                a(f"s_waitcnt lgkmcnt({nr})")
                self.mfma(a, self.V_FB)
                self.reads(a, self.V_FB, u, 3)
                a(f"s_waitcnt lgkmcnt({nr})")
                self.mfma(a, self.V_FA)
                if filler:
                    filler(a)
                a("s_waitcnt lgkmcnt(0)")
                a("s_barrier")
                self.reads(a, self.V_FA, (u + 1) % NS, 0)
                self.mfma(a, self.V_FB)
            a(f"s_add_u32 s{S_N}, s{S_N}, 1")
            a(f"s_cmp_ge_u32 s{S_N}, s{S_NEND}")
            if u < NS - 1:
                a(f"s_cbranch_scc1 {pfx}_done")
            else:
                a(f"s_cbranch_scc0 {pfx}_loop")
        a.label(f"{pfx}_done")
        a("s_waitcnt lgkmcnt(0)")
        a("s_nop 15")
        if OPT.get("stamp"):
            T = self.V_TMP
            a("s_memtime s[64:65]")
            a("s_memrealtime s[66:67]")
            a("s_memrealtime s[78:79]")
            a("s_waitcnt lgkmcnt(0)")
            srd(a, 68, 44, (60 << 20) + (0 if pfx == "L_g1" else (1 << 20)), 1 << 20)
            a(f"""
            s_lshl_b32 s72, s2, 3
            s_add_u32 s72, s72, s{S_WAVE}
            s_lshl_b32 s72, s72, 5
            v_mov_b32 v{T}, 0
            """)
            for i in range(8):
                a(f"v_mov_b32 v{T+1}, s{60+i}")
                a(f"buffer_store_dword v{T+1}, v{T}, s[68:71], s72 offen offset:{4*i}")


G1 = None
G1_WGS = 240


def gen_gemm1(a):
    global G1
    C = G1 = Core(4, 3)
    name = "gemm1_kernel"
    kernel_begin(a, name)
    a(f"""
    s_cmp_ge_u32 s2, {G1_WGS}
    s_cbranch_scc1 L_g1_end
    {"s_memrealtime s[74:75]" if OPT.get("stamp") else ""}
    s_cmp_ge_u32 s2, 240
    s_cbranch_scc1 L_g1_pf
    s_load_dwordx4 s[40:43], s[0:1], {KA_WDRE}
    s_load_dwordx2 s[44:45], s[0:1], {KA_WS}
    s_waitcnt lgkmcnt(0)
    s_cmp_ge_u32 s2, 64
    s_cbranch_scc1 L_g1_ffn
    """)
    srd(a, S_SRDP, 44, WS_XN, 2048 * 1024)
    a("""
    s_lshr_b32 s21, s2, 3
    s_and_b32 s24, s2, 7
    s_lshl_b32 s24, s24, 8
    s_cmp_ge_u32 s21, 4
    s_cselect_b64 s[46:47], s[42:43], s[40:41]
    s_and_b32 s25, s21, 3
    s_lshl_b32 s25, s25, 7
    """)
    srd(a, S_SRDQ, 46, 0, 512 * 1024)
    a("s_branch L_g1_main")
    a.label("L_g1_ffn")
    srd(a, S_SRDP, 44, WS_WGU, 2816 * 1024)
    srd(a, S_SRDQ, 44, WS_XN, 2048 * 1024)
    a("""
    s_sub_u32 s23, s2, 64
    s_and_b32 s25, s23, 15
    s_lshl_b32 s25, s25, 7
    s_lshr_b32 s24, s23, 4
    s_lshl_b32 s24, s24, 8
    s_mov_b32 s21, 8
    """)
    a.label("L_g1_main")
    a(f"""
    s_mov_b32 s26, s{S_SRDP+2}
    s_mov_b32 s27, s{S_SRDQ+2}
    s_mov_b32 s{S_JL}, 0
    s_mov_b32 s{S_JEND}, 8
    s_mov_b32 s{S_NEND}, 8
    """)

    def step_setup(a):
        a(f"""
        s_lshl_b32 s{S_OFFP}, s{S_JL}, 7
        s_mov_b32 s{S_OFFQ}, s{S_OFFP}
        s_cmp_lt_u32 s{S_JL}, s{S_JEND}
        s_cselect_b32 s{S_SRDP+2}, s26, 0
        s_cselect_b32 s{S_SRDQ+2}, s27, 0
        s_add_u32 s{S_JL}, s{S_JL}, 1
        """)

    PFV = C.V_TMP + 12

    def pre(a):
        a(f"""
        s_load_dwordx4 s[48:51], s[0:1], {KA_WSRE}
        s_lshl_b32 s38, s2, 2
        s_add_u32 s38, s38, s{S_WAVE}
        s_lshl_b32 s38, s38, 10
        v_lshlrev_b32 v{PFV+8}, 4, v1
        s_waitcnt lgkmcnt(0)
        """)
        srd(a, 52, 48, 0, 2048 * 4096)
        srd(a, 56, 50, 0, 2048 * 4096)

    def filler(a):
        a(f"buffer_load_dwordx4 v[{PFV}:{PFV+3}], v{PFV+8}, s[52:55], s38 offen")
        a(f"buffer_load_dwordx4 v[{PFV+4}:{PFV+7}], v{PFV+8}, s[56:59], s38 offen")
        a(f"s_add_u32 s38, s38, {960*1024}")

    if OPT.get("pf", 2) == 2:
        C.body(a, "L_g1", step_setup, 24, 25, 1024, 1024, None, pre, filler)
    else:
        C.body(a, "L_g1", step_setup, 24, 25, 1024, 1024)
    t = C.V_TMP
    a(f"""
    v_and_b32 v{t}, {C.LN_MASK}, v1
    v_lshrrev_b32 v{t+1}, {C.LM_SHIFT}, v1
    s_lshr_b32 s28, s{S_WAVE}, 1
    s_and_b32 s29, s{S_WAVE}, 1
    s_cmp_ge_u32 s21, 8
    s_cbranch_scc1 L_g1_epi_ffn
    """)
    RS = 272
    a(f"""
    s_lshr_b32 s30, s21, 2
    s_lshl_b32 s30, s30, 21
    s_add_u32 s30, s30, {WS_B}
    s_add_u32 s32, s44, s30
    s_addc_u32 s33, s45, 0
    s_mov_b32 s34, {512*4096}
    s_mov_b32 s35, 0x00020000
    s_mul_i32 s36, s{S_WAVE}, {64*RS}
    v_mul_u32_u24 v{t+2}, {RS}, v{t}
    v_lshlrev_b32 v{t+3}, 3, v{t+1}
    v_add3_u32 v{t+2}, v{t+2}, v{t+3}, s36
    s_cmp_ge_u32 s21, 4
    s_cselect_b32 s31, 0x80008000, 0
    s_barrier
    """)
    k = 0
    for (b, moff, noff) in C.quads():
        r = t + 4 + 2 * (k % 4)
        k += 1
        a(f"v_cvt_pk_bf16_f32 v{r}, v{b}, v{b+1}")
        a(f"v_cvt_pk_bf16_f32 v{r+1}, v{b+2}, v{b+3}")
        a(f"v_xor_b32 v{r}, s31, v{r}")
        a(f"v_xor_b32 v{r+1}, s31, v{r+1}")
        a(f"ds_write_b64 v{t+2}, v[{r}:{r+1}] offset:{noff*RS + moff*2}")
    a(f"""
    v_lshrrev_b32 v{t+3}, 4, v1
    v_and_b32 v{t+4}, 15, v1
    v_lshlrev_b32 v{t+4}, 4, v{t+4}
    v_mul_u32_u24 v{t+5}, {RS}, v{t+3}
    v_add3_u32 v{t+5}, v{t+5}, v{t+4}, s36
    v_lshlrev_b32 v{t+3}, 12, v{t+3}
    v_add_u32 v{t+3}, v{t+3}, v{t+4}
    s_lshl_b32 s30, s29, 6
    s_add_u32 s30, s30, s25
    s_lshl_b32 s30, s30, 12
    s_lshl_b32 s37, s28, 7
    s_add_u32 s37, s37, s24
    s_lshl_b32 s37, s37, 1
    s_add_u32 s30, s30, s37
    s_waitcnt lgkmcnt(0)
    """)
    for i in range(16):
        a(f"ds_read_b128 v[{C.V_ACC+4*i}:{C.V_ACC+4*i+3}], v{t+5} offset:{i*4*RS}")
    for i in range(16):
        a(f"s_waitcnt lgkmcnt({15-i})")
        a(f"buffer_store_dwordx4 v[{C.V_ACC+4*i}:{C.V_ACC+4*i+3}], v{t+3}, s[32:35], s30 offen")
        a("s_add_u32 s30, s30, 0x4000")
    if OPT.get("stamp"):
        stamp(a, 3)
        a("s_waitcnt vmcnt(0)")
        stamp(a, 4)
        stamp_flush(a, "L_g1", t + 4)
    a("s_endpgm")
    a.label("L_g1_epi_ffn")
    srd(a, 32, 44, WS_H, 2048 * 4096)
    c0 = -2.0 * 0.7978845608028654 * 1.4426950408889634
    c1 = c0 * 0.044715
    RS2 = 144
    a(f"""
    s_mul_i32 s36, s{S_WAVE}, {64*RS2}
    v_mul_u32_u24 v{t+2}, {RS2}, v{t}
    v_lshlrev_b32 v{t+3}, 3, v{t+1}
    v_add3_u32 v{t+2}, v{t+2}, v{t+3}, s36
    v_mov_b32 v{t+4}, 0x{f32bits(c0):08x}
    v_mov_b32 v{t+5}, 0x{f32bits(c0):08x}
    v_mov_b32 v{t+10}, 0x{f32bits(c1):08x}
    v_mov_b32 v{t+11}, 0x{f32bits(c1):08x}
    s_barrier
    """)
    k = 0
    qd = {(m, n): r for (r, m, n) in C.quads()}
    for (G0, moff, noff) in C.quads():
        if moff % 64 >= 32:
            continue
        U0 = qd[(moff + 32, noff)]
        foff = (moff // 64) * 32 + moff % 64
        for _once in range(1):
            for _once2 in range(1):
                g = 4 + 8 * (k % 2)
                o = t + 6 + 2 * (k % 2)
                k += 1
                for p in range(2):
                    a(f"v_pk_mul_f32 v[{g+2*p}:{g+2*p+1}], v[{G0+2*p}:{G0+2*p+1}], v[{G0+2*p}:{G0+2*p+1}]")
                for p in range(2):
                    a(f"v_pk_fma_f32 v[{g+2*p}:{g+2*p+1}], v[{g+2*p}:{g+2*p+1}], v[{t+10}:{t+11}], v[{t+4}:{t+5}]")
                for p in range(2):
                    a(f"v_pk_mul_f32 v[{g+2*p}:{g+2*p+1}], v[{g+2*p}:{g+2*p+1}], v[{G0+2*p}:{G0+2*p+1}]")
                for r in range(4):
                    a(f"v_exp_f32 v{g+r}, v{g+r}")
                for p in range(2):
                    a(f"v_pk_mul_f32 v[{g+4+2*p}:{g+4+2*p+1}], v[{G0+2*p}:{G0+2*p+1}], v[{U0+2*p}:{U0+2*p+1}]")
                for p in range(2):
                    a(f"v_pk_add_f32 v[{g+2*p}:{g+2*p+1}], v[{g+2*p}:{g+2*p+1}], 1.0 op_sel_hi:[1,0]")
                for r in range(4):
                    a(f"v_rcp_f32 v{g+r}, v{g+r}")
                a("s_nop 0")
                for p in range(2):
                    a(f"v_pk_mul_f32 v[{g+2*p}:{g+2*p+1}], v[{g+2*p}:{g+2*p+1}], v[{g+4+2*p}:{g+4+2*p+1}]")
                a(f"v_cvt_pk_bf16_f32 v{o}, v{g}, v{g+1}")
                a(f"v_cvt_pk_bf16_f32 v{o+1}, v{g+2}, v{g+3}")
                a(f"ds_write_b64 v{t+2}, v[{o}:{o+1}] offset:{noff*RS2 + foff*2}")
    a(f"""
    v_lshrrev_b32 v{t+3}, 3, v1
    v_and_b32 v{t+4}, 7, v1
    v_lshlrev_b32 v{t+4}, 4, v{t+4}
    v_mul_u32_u24 v{t+5}, {RS2}, v{t+3}
    v_add3_u32 v{t+5}, v{t+5}, v{t+4}, s36
    v_lshlrev_b32 v{t+3}, 12, v{t+3}
    v_add_u32 v{t+3}, v{t+3}, v{t+4}
    s_lshl_b32 s30, s29, 6
    s_add_u32 s30, s30, s25
    s_lshl_b32 s30, s30, 12
    s_lshl_b32 s37, s28, 7
    s_add_u32 s37, s37, s24
    s_add_u32 s30, s30, s37
    s_waitcnt lgkmcnt(0)
    """)
    for i in range(8):
        a(f"ds_read_b128 v[{C.V_ACC+4*i}:{C.V_ACC+4*i+3}], v{t+5} offset:{i*8*RS2}")
    for i in range(8):
        a(f"s_waitcnt lgkmcnt({7-i})")
        a(f"buffer_store_dwordx4 v[{C.V_ACC+4*i}:{C.V_ACC+4*i+3}], v{t+3}, s[32:35], s30 offen")
        a("s_add_u32 s30, s30, 0x8000")
    if OPT.get("stamp"):
        stamp(a, 3)
        a("s_waitcnt vmcnt(0)")
        stamp(a, 4)
        stamp_flush(a, "L_g1", t + 6)
    a("s_endpgm")
    a.label("L_g1_pf")
    a(f"""
    s_load_dwordx4 s[48:51], s[0:1], {KA_WSRE}
    v_and_b32 v1, 63, v0
    v_lshrrev_b32 v2, 6, v0
    s_nop 0
    v_readfirstlane_b32 s3, v2
    s_sub_u32 s38, s2, 240
    s_lshl_b32 s38, s38, 3
    s_nop 2
    s_add_u32 s38, s38, s3
    s_lshl_b32 s38, s38, 16
    v_lshlrev_b32 v3, 4, v1
    s_mov_b32 s39, 0
    s_waitcnt lgkmcnt(0)
    """)
    srd(a, 52, 48, 0, 2048 * 4096)
    srd(a, 56, 50, 0, 2048 * 4096)
    a.label("L_g1_pfl")
    for i in range(4):
        a(f"buffer_load_dwordx4 v[{4+8*i}:{7+8*i}], v3, s[52:55], s38 offen offset:{1024*i}")
        a(f"buffer_load_dwordx4 v[{8+8*i}:{11+8*i}], v3, s[56:59], s38 offen offset:{1024*i}")
    a("""
    s_add_u32 s38, s38, 4096
    s_add_u32 s39, s39, 1
    s_cmp_lt_u32 s39, 16
    s_cbranch_scc1 L_g1_pfl
    """)
    a.label("L_g1_end")
    a("s_endpgm")
    return kernel_desc(name, C.V_TMP + 24)


G2 = None
G2_WGS = 256


def gen_gemm2(a):
    global G2
    C = G2 = Core(2, 4)
    name = "gemm2_kernel"
    kernel_begin(a, name)
    a(f"""
    s_cmp_ge_u32 s2, {G2_WGS}
    s_cbranch_scc1 L_g2_end
    {"s_memrealtime s[74:75]" if OPT.get("stamp") else ""}
    s_load_dwordx4 s[40:43], s[0:1], {KA_WSRE}
    s_load_dwordx2 s[44:45], s[0:1], {KA_WS}
    s_load_dwordx2 s[48:49], s[0:1], {KA_X}
    s_load_dwordx4 s[52:55], s[0:1], {KA_OUT}
    s_and_b32 s23, s2, 3
    s_lshr_b32 s20, s2, 2
    s_and_b32 s20, s20, 1
    s_lshl_b32 s20, s20, 3
    s_lshr_b32 s21, s2, 3
    s_and_b32 s22, s21, 7
    s_add_u32 s20, s20, s22
    s_lshr_b32 s22, s21, 3
    s_mul_i32 s{S_JL}, s23, 86
    s_add_u32 s{S_JEND}, s{S_JL}, 86
    s_lshr_b32 s{S_JL}, s{S_JL}, 2
    s_lshr_b32 s{S_JEND}, s{S_JEND}, 2
    s_sub_u32 s{S_NEND}, s{S_JEND}, s{S_JL}
    s_lshl_b32 s24, s22, 7
    s_lshl_b32 s25, s20, 7
    s_waitcnt lgkmcnt(0)
    """)
    srd(a, S_SRDP, 44, WS_B, 3 * 512 * 4096)
    a(f"""
    s_add_u32 s46, s44, {WS_H}
    s_addc_u32 s47, s45, 0
    s_mov_b32 s{S_SRDQ+3}, 0x00020000
    """)

    def step_setup(a):
        a(f"""
        s_lshr_b32 s26, s{S_JL}, 5
        s_and_b32 s{S_OFFQ}, s{S_JL}, 31
        s_lshl_b32 s{S_OFFQ}, s{S_OFFQ}, 7
        s_lshl_b32 s27, s26, 21
        s_add_u32 s{S_OFFP}, s{S_OFFQ}, s27
        s_cmp_eq_u32 s26, 0
        s_cselect_b64 s[{S_SRDQ}:{S_SRDQ+1}], s[40:41], s[42:43]
        s_cmp_ge_u32 s26, 2
        s_cselect_b64 s[{S_SRDQ}:{S_SRDQ+1}], s[46:47], s[{S_SRDQ}:{S_SRDQ+1}]
        s_cmp_lt_u32 s{S_JL}, s{S_JEND}
        s_cselect_b32 s{S_SRDP+2}, {3*512*4096}, 0
        s_cselect_b32 s{S_SRDQ+2}, {2048*4096}, 0
        s_add_u32 s{S_JL}, s{S_JL}, 1
        """)

    C.body(a, "L_g2", step_setup, 24, 25, 4096, 4096)
    t = C.V_TMP
    srd(a, 32, 44, WS_PART, 64 * 16 * 8192)
    a(f"""
    s_lshl_b32 s28, s20, 2
    s_add_u32 s28, s28, s22
    s_lshl_b32 s31, s{S_WAVE}, 11
    v_lshlrev_b32 v{t}, 4, v1
    """)
    for tl in range(4):
        a(f"""
        s_cmp_eq_u32 s23, {tl}
        s_cbranch_scc1 L_g2_pub{tl}
        s_lshl_b32 s30, s28, 2
        s_add_u32 s30, s30, {tl}
        s_lshl_b32 s30, s30, 2
        s_add_u32 s30, s30, s23
        s_lshl_b32 s30, s30, 13
        s_add_u32 s30, s30, s31
        """)
        b = C.V_ACC + tl * 16
        r = t + 4 + 8 * (tl & 1)
        for i in range(8):
            a(f"v_cvt_pk_bf16_f32 v{r+i}, v{b+2*i}, v{b+2*i+1}")
        a(f"buffer_store_dwordx4 v[{r}:{r+3}], v{t}, s[32:35], s30 offen sc1")
        a(f"buffer_store_dwordx4 v[{r+4}:{r+7}], v{t}, s[32:35], s30 offen offset:1024 sc1")
        a.label(f"L_g2_pub{tl}")
    srd(a, 56, 54, 0, 256)
    a("s_waitcnt vmcnt(0)")
    stamp(a, 3)
    a(f"""
    s_barrier
    s_cmp_lg_u32 s{S_WAVE}, 0
    s_cbranch_scc1 L_g2_wait
    s_lshl_b32 s29, s28, 2
    v_mov_b32 v{t+1}, 1
    v_mov_b32 v{t+2}, 0
    s_mov_b64 s[60:61], exec
    s_mov_b64 exec, 1
    buffer_atomic_add v{t+1}, v{t+2}, s[56:59], s29 offen
    """)
    a.label("L_g2_spin")
    a(f"""
    buffer_load_dword v{t+1}, v{t+2}, s[56:59], s29 offen sc1
    s_waitcnt vmcnt(0)
    v_readfirstlane_b32 s30, v{t+1}
    s_nop 3
    s_cmp_ge_u32 s30, 4
    s_cbranch_scc1 L_g2_spun
    s_sleep 1
    s_branch L_g2_spin
    """)
    a.label("L_g2_spun")
    a("s_mov_b64 exec, s[60:61]")
    a.label("L_g2_wait")
    a("s_barrier")
    stamp(a, 4)
    srd(a, 60, 48, 0, 2048 * 1024)
    srd(a, 64, 52, 0, 2048 * 1024)
    L = t + 4
    X = L + 24
    QOFF = [(n % 32) * 1024 + (m % 32) * 2 for (r, m, n) in sorted(C.quads()) if r < C.V_ACC + 16]
    assert len(QOFF) == 4 and max(QOFF) < 32768
    a(f"""
    s_and_b32 s36, s{S_WAVE}, 1
    s_lshl_b32 s36, s36, 1
    s_and_b32 s37, s23, 1
    s_add_u32 s36, s36, s37
    s_lshl_b32 s36, s36, 5
    s_add_u32 s36, s36, s25
    s_lshr_b32 s37, s{S_WAVE}, 1
    s_lshl_b32 s37, s37, 1
    s_lshr_b32 s38, s23, 1
    s_add_u32 s37, s37, s38
    s_lshl_b32 s37, s37, 5
    s_add_u32 s37, s37, s24
    v_and_b32 v{t+1}, {C.LN_MASK}, v1
    v_add_u32 v{t+1}, s36, v{t+1}
    v_lshlrev_b32 v{t+1}, 10, v{t+1}
    v_lshrrev_b32 v{t+2}, {C.LM_SHIFT}, v1
    v_lshlrev_b32 v{t+2}, 2, v{t+2}
    v_add_u32 v{t+2}, s37, v{t+2}
    v_lshlrev_b32 v{t+2}, 1, v{t+2}
    v_add_u32 v{t+1}, v{t+1}, v{t+2}
    s_lshl_b32 s38, s28, 2
    s_add_u32 s38, s38, s23
    s_lshl_b32 s38, s38, 2
    """)
    for i in range(1, 4):
        a(f"""
        s_add_u32 s30, s23, {i}
        s_and_b32 s30, s30, 3
        s_add_u32 s30, s30, s38
        s_lshl_b32 s30, s30, 13
        s_add_u32 s30, s30, s31
        """)
        r = L + (i - 1) * 8
        a(f"buffer_load_dwordx4 v[{r}:{r+3}], v{t}, s[32:35], s30 offen sc1")
        a(f"buffer_load_dwordx4 v[{r+4}:{r+7}], v{t}, s[32:35], s30 offen offset:1024 sc1")
    a("s_mov_b32 s36, 0")
    a("s_mov_b32 s37, 0x4000")
    for q in range(4):
        a(f"buffer_load_dwordx2 v[{X+2*q}:{X+2*q+1}], v{t+1}, s[60:63], s{36 + QOFF[q] // 16384} offen offset:{QOFF[q] % 16384}")
    for tl in range(3):
        a(f"s_cmp_eq_u32 s23, {tl}")
        a(f"s_cbranch_scc1 L_g2_fin{tl}")
    for tl in (3, 0, 1, 2):
        if tl != 3:
            a.label(f"L_g2_fin{tl}")
        a("s_waitcnt vmcnt(0)")
        b = C.V_ACC + tl * 16
        for src in list(range(3)) + ["x"]:
            for i in range(8):
                rr = (L + src * 8 + i) if src != "x" else X + i
                a(f"v_lshlrev_b32 v{t+2}, 16, v{rr}")
                a(f"v_and_b32 v{t+3}, 0xffff0000, v{rr}")
                a(f"v_add_f32 v{b+2*i}, v{b+2*i}, v{t+2}")
                a(f"v_add_f32 v{b+2*i+1}, v{b+2*i+1}, v{t+3}")
        for q in range(4):
            a(f"v_cvt_pk_bf16_f32 v{X+2*q}, v{b+4*q}, v{b+4*q+1}")
            a(f"v_cvt_pk_bf16_f32 v{X+2*q+1}, v{b+4*q+2}, v{b+4*q+3}")
            a(f"buffer_store_dwordx2 v[{X+2*q}:{X+2*q+1}], v{t+1}, s[64:67], s{36 + QOFF[q] // 16384} offen offset:{QOFF[q] % 16384}")
        if OPT.get("stamp"):
            a("s_waitcnt vmcnt(0)")
            stamp(a, 5)
            stamp_flush(a, "L_g2", t + 2)
        a("s_endpgm")
    a.label("L_g2_end")
    a("s_endpgm")
    return kernel_desc(name, X + 8)


def main():
    global ARGS
    ARGS = [x for x in sys.argv[1:] if "=" not in x]
    for x in sys.argv[1:]:
        if "=" in x:
            k, v = x.split("=")
            OPT[k] = int(v)
    hdr = open("cdna_kernels/" + NAME + ".s.ref").read().split("\n")
    top = [l for l in hdr if l.startswith(";") and "@launch" not in l and "Override" not in l and "grid=ceil" not in l]
    a = Asm()
    descs = []
    a.raw('.amdgcn_target "amdgcn-amd-amdhsa--gfx950"')
    a.raw(".text")
    descs.append(gen_prep(a))
    descs.append(gen_gemm1(a))
    descs.append(gen_gemm2(a))
    out = "\n".join(top) + "\n"
    out += f"; @launch kernel=prep_kernel grid=({PREP_WGS},1,1) block=(256,1,1) lds=0\n"
    out += f"; @launch kernel=gemm1_kernel grid=({G1_WGS},1,1) block=(512,1,1) lds={G1.LDS}\n"
    out += f"; @launch kernel=gemm2_kernel grid=({G2_WGS},1,1) block=(512,1,1) lds={G2.LDS}\n"
    out += a.text()
    out += '.section .rodata,"a"\n'
    for d in descs:
        out += ".p2align 6\n" + d
    path = ARGS[0] if ARGS else "cdna_kernels/" + NAME + ".s"
    open(path, "w").write(out)


if __name__ == "__main__":
    main()
```

```python
import struct
import sys

NAME = "parallel_sum__spectral_fnet__geglu_ffn__prompt"
OPT = {}

WS_XN = 0
WS_WGU = 2 << 20
WS_B = 8 << 20
WS_H = 16 << 20
WS_PART = 32 << 20
WS_SIZE = 268435456

KA_X, KA_WSRE, KA_WSIM, KA_WDRE, KA_WDIM, KA_BX, KA_WG, KA_WU, KA_WDN, KA_OUT, KA_DBG, KA_WS = [8 * i for i in range(12)]


def f32bits(x):
    return struct.unpack("<I", struct.pack("<f", x))[0]


class Asm:
    def __init__(self):
        self.lines = []

    def __call__(self, s):
        for ln in s.strip("\n").split("\n"):
            self.lines.append("    " + ln.strip())

    def label(self, s):
        self.lines.append(s + ":")

    def raw(self, s):
        self.lines.append(s)

    def text(self):
        return "\n".join(self.lines) + "\n"


def kernel_begin(a, name):
    a.raw(f".globl {name}")
    a.raw(".p2align 8")
    a.raw(f".type {name},@function")
    a.label(name)


def kernel_desc(name, vgpr, sgpr=96):
    acc = (vgpr + 3) // 4 * 4
    return f""".amdhsa_kernel {name}
  .amdhsa_next_free_vgpr {vgpr}
  .amdhsa_next_free_sgpr {sgpr}
  .amdhsa_accum_offset {acc}
  .amdhsa_group_segment_fixed_size 0
  .amdhsa_kernarg_size 96
  .amdhsa_user_sgpr_count 2
  .amdhsa_user_sgpr_kernarg_segment_ptr 1
  .amdhsa_system_sgpr_workgroup_id_x 1
  .amdhsa_float_denorm_mode_32 3
.end_amdhsa_kernel
"""


def srd(a, d, base, off, size):
    if off:
        a(f"s_add_u32 s{d}, s{base}, {off}")
        a(f"s_addc_u32 s{d+1}, s{base+1}, 0")
    else:
        a(f"s_mov_b32 s{d}, s{base}")
        a(f"s_mov_b32 s{d+1}, s{base+1}")
    a(f"s_mov_b32 s{d+2}, {size}")
    a(f"s_mov_b32 s{d+3}, 0x00020000")


N_LN = 2048
N_WGU = 22 * 64
N_WD = 8 * 176
N_PF = 0
PREP_WGS = 0


def gen_prep(a):
    global N_PF, PREP_WGS
    N_PF = 1024 if OPT.get("pf", 0) == 1 else 0
    PREP_WGS = (N_LN + N_WGU + N_WD + N_PF) // 4
    name = "prep_kernel"
    kernel_begin(a, name)
    a(f"""
    s_cmp_ge_u32 s2, {PREP_WGS}
    s_cbranch_scc1 L_prep_end
    s_load_dwordx2 s[4:5], s[0:1], {KA_X}
    s_load_dwordx4 s[8:11], s[0:1], {KA_WG}
    s_load_dwordx2 s[12:13], s[0:1], {KA_WDN}
    s_load_dwordx2 s[14:15], s[0:1], {KA_WS}
    v_lshrrev_b32 v1, 6, v0
    v_and_b32 v2, 63, v0
    s_nop 0
    v_readfirstlane_b32 s3, v1
    s_lshl_b32 s16, s2, 2
    s_nop 3
    s_add_u32 s16, s16, s3
    s_waitcnt lgkmcnt(0)
    s_cmp_lt_u32 s16, {N_PF}
    s_cbranch_scc1 L_prep_pf
    s_sub_u32 s16, s16, {N_PF}
    s_cmp_ge_u32 s16, {N_LN}
    s_cbranch_scc1 L_prep_wgu
    """)
    srd(a, 20, 4, 0, 2048 * 1024)
    srd(a, 24, 14, WS_XN, 2048 * 1024)
    a("""
    s_lshl_b32 s17, s16, 10
    v_lshlrev_b32 v3, 4, v2
    buffer_load_dwordx4 v[4:7], v3, s[20:23], s17 offen
    v_lshlrev_b32 v30, 2, v2
    v_xor_b32 v31, 4, v30
    v_xor_b32 v32, 8, v30
    v_xor_b32 v33, 16, v30
    v_xor_b32 v34, 32, v30
    v_xor_b32 v35, 64, v30
    v_xor_b32 v36, 128, v30
    s_waitcnt vmcnt(0)
    """)
    for i in range(4):
        a(f"v_lshlrev_b32 v{8+2*i}, 16, v{4+i}")
        a(f"v_and_b32 v{9+2*i}, 0xffff0000, v{4+i}")
    a("""
    v_add_f32 v16, v8, v9
    v_add_f32 v17, v10, v11
    v_add_f32 v18, v12, v13
    v_add_f32 v19, v14, v15
    v_add_f32 v16, v16, v17
    v_add_f32 v18, v18, v19
    v_add_f32 v16, v16, v18
    """)
    for r in range(31, 37):
        a(f"""
        ds_bpermute_b32 v17, v{r}, v16
        s_waitcnt lgkmcnt(0)
        v_add_f32 v16, v16, v17
        """)
    a(f"v_mul_f32 v16, 0x{f32bits(1.0/512):08x}, v16")
    for i in range(8):
        a(f"v_sub_f32 v{20+i}, v{8+i}, v16")
    a("v_mul_f32 v17, v20, v20")
    for i in range(1, 8):
        a(f"v_fmac_f32 v17, v{20+i}, v{20+i}")
    for r in range(31, 37):
        a(f"""
        ds_bpermute_b32 v18, v{r}, v17
        s_waitcnt lgkmcnt(0)
        v_add_f32 v17, v17, v18
        """)
    a(f"""
    v_mul_f32 v17, 0x{f32bits(1.0/512):08x}, v17
    v_cvt_pk_bf16_f32 v18, v16, v17
    v_lshlrev_b32 v16, 16, v18
    v_and_b32 v17, 0xffff0000, v18
    v_add_f32 v17, 0x{f32bits(1e-5):08x}, v17
    v_cvt_pk_bf16_f32 v18, v17, v17
    v_lshlrev_b32 v17, 16, v18
    v_sqrt_f32 v17, v17
    s_nop 0
    v_cvt_pk_bf16_f32 v18, v17, v17
    v_lshlrev_b32 v17, 16, v18
    v_rcp_f32 v19, v17
    """)
    for i in range(8):
        a(f"v_sub_f32 v{20+i}, v{8+i}, v16")
    for i in range(4):
        a(f"v_cvt_pk_bf16_f32 v{4+i}, v{20+2*i}, v{21+2*i}")
    for i in range(4):
        a(f"v_lshlrev_b32 v{8+2*i}, 16, v{4+i}")
        a(f"v_and_b32 v{9+2*i}, 0xffff0000, v{4+i}")
    for i in range(8):
        a(f"v_mul_f32 v{20+i}, v{8+i}, v19")
    for i in range(8):
        a(f"v_fma_f32 v{8+i}, -v{20+i}, v17, v{8+i}")
    for i in range(8):
        a(f"v_fmac_f32 v{20+i}, v{8+i}, v19")
    for i in range(4):
        a(f"v_cvt_pk_bf16_f32 v{4+i}, v{20+2*i}, v{21+2*i}")
    a("""
    buffer_store_dwordx4 v[4:7], v3, s[24:27], s17 offen
    s_endpgm
    """)
    a.label("L_prep_wgu")
    a(f"""
    s_cmp_ge_u32 s16, {N_LN + N_WGU}
    s_cbranch_scc1 L_prep_wd
    s_sub_u32 s16, s16, {N_LN}
    s_lshr_b32 s17, s16, 6
    s_and_b32 s18, s16, 63
    """)
    srd(a, 20, 8, 0, 512 * 2752)
    srd(a, 24, 10, 0, 512 * 2752)
    srd(a, 28, 14, WS_WGU, 2816 * 1024)
    a("""
    s_lshl_b32 s19, s17, 6
    v_add_u32 v3, s19, v2
    v_lshlrev_b32 v4, 1, v3
    s_mul_i32 s32, s18, 22016
    """)
    for j in range(8):
        a(f"buffer_load_ushort v{16+j}, v4, s[20:23], s32 offen")
        a(f"buffer_load_ushort v{24+j}, v4, s[24:27], s32 offen")
        if j < 7:
            a("s_add_u32 s32, s32, 2752")
    a("""
    v_lshrrev_b32 v5, 5, v3
    v_lshlrev_b32 v5, 6, v5
    v_and_b32 v6, 31, v3
    v_add_u32 v5, v5, v6
    v_lshlrev_b32 v5, 10, v5
    s_lshl_b32 s33, s18, 4
    v_mov_b32 v7, 1376
    v_cmp_gt_u32 vcc, v7, v3
    s_waitcnt vmcnt(0)
    """)
    for j in range(8):
        a(f"v_lshl_or_b32 v{8+j}, v{17+2*j}, 16, v{16+2*j}")
    for j in range(8):
        a(f"v_cndmask_b32 v{8+j}, 0, v{8+j}, vcc")
    a("""
    buffer_store_dwordx4 v[8:11], v5, s[28:31], s33 offen
    s_add_u32 s33, s33, 32768
    buffer_store_dwordx4 v[12:15], v5, s[28:31], s33 offen
    s_endpgm
    """)
    a.label("L_prep_wd")
    a(f"""
    s_sub_u32 s16, s16, {N_LN + N_WGU}
    s_mul_hi_u32 s17, s16, {((1 << 32) + 175) // 176}
    s_mul_i32 s18, s17, 176
    s_sub_u32 s18, s16, s18
    """)
    srd(a, 20, 12, 0, 1376 * 1024)
    srd(a, 28, 14, WS_B + (4 << 20), 512 * 4096)
    a("""
    s_lshl_b32 s19, s17, 6
    v_add_u32 v3, s19, v2
    v_lshlrev_b32 v4, 1, v3
    s_lshl_b32 s32, s18, 13
    """)
    for j in range(8):
        a(f"buffer_load_ushort v{16+j}, v4, s[20:23], s32 offen")
        if j < 7:
            a("s_add_u32 s32, s32, 1024")
    a("""
    v_lshlrev_b32 v5, 12, v3
    s_lshl_b32 s33, s18, 4
    s_waitcnt vmcnt(0)
    """)
    for j in range(4):
        a(f"v_lshl_or_b32 v{8+j}, v{17+2*j}, 16, v{16+2*j}")
    a("""
    buffer_store_dwordx4 v[8:11], v5, s[28:31], s33 offen
    """)
    a("s_endpgm")
    a.label("L_prep_pf")
    a(f"""
    s_load_dwordx4 s[20:23], s[0:1], {KA_WSRE}
    s_lshl_b32 s17, s16, 13
    v_lshlrev_b32 v3, 4, v2
    s_waitcnt lgkmcnt(0)
    """)
    srd(a, 24, 20, 0, 2048 * 4096)
    srd(a, 28, 22, 0, 2048 * 4096)
    for i in range(8):
        a(f"buffer_load_dwordx4 v[{4+4*(i%4)}:{7+4*(i%4)}], v3, s[24:27], s17 offen")
        a(f"buffer_load_dwordx4 v[{20+4*(i%4)}:{23+4*(i%4)}], v3, s[28:31], s17 offen")
        a("s_add_u32 s17, s17, 1024")
    a.label("L_prep_end")
    a("s_endpgm")
    return kernel_desc(name, 40)


S_SRDP = 4
S_SRDQ = 8
S_OFFP = 12
S_OFFQ = 13
S_WOFF = 14
S_N = 15
S_NEND = 16
S_JL = 17
S_JEND = 18
S_WAVE = 19
S_WOFFQ = 39


def stamp(a, k):
    if OPT.get("stamp"):
        a(f"s_memrealtime s[{74+2*k}:{75+2*k}]")


def stamp_flush(a, pfx, T, n=8):
    if OPT.get("stamp"):
        a("s_waitcnt lgkmcnt(0)")
        srd(a, 68, 44, (62 << 20) + (0 if pfx == "L_g1" else (1 << 20)), 1 << 20)
        a(f"""
        s_lshl_b32 s72, s2, 3
        s_add_u32 s72, s72, s{S_WAVE}
        s_lshl_b32 s72, s72, 6
        v_mov_b32 v{T}, 0
        """)
        for i in range(2 * n):
            a(f"v_mov_b32 v{T+1}, s{74+i}")
            a(f"buffer_store_dword v{T+1}, v{T}, s[68:71], s72 offen offset:{4*i}")


class Core:
    def __init__(self, MT, NS):
        self.MT, self.NS = MT, NS
        self.BM = 64 * MT
        self.PSZ = self.BM * 128
        self.QSZ = 16384
        self.QBASE = NS * self.PSZ
        self.LDS = self.QBASE + NS * self.QSZ
        self.NPI = self.BM // 32
        self.NDMA = self.NPI + 4
        self.V_LDP = 4
        self.V_LDQ = 12
        self.M16 = bool(OPT.get("m16", 0))
        self.V_FA = 4
        if self.M16:
            self.PA = 4
            self.PB = self.PA + MT * 4
            self.QA = self.PB + MT * 4
            self.QB = self.QA + 16
            self.V_ACC = self.QB + 16
            nkk, fr = 2, 2048
            nP, nQ = 2 * MT, 4
        else:
            self.FS = (MT + 2) * 4
            self.V_FB = self.V_FA + self.FS
            self.V_ACC = self.V_FB + self.FS
            nkk, fr = 4, 4096
            nP, nQ = MT, 2
        self.V_RD = self.V_ACC + MT * 32
        self.rd = {}
        n = 0
        for op, base, ssz, nt in (("P", 0, self.PSZ, nP), ("Q", self.QBASE, self.QSZ, nQ)):
            wins = sorted({(base + st * ssz + t * fr) >> 16 for st in range(NS) for t in range(nt)})
            for w in wins:
                for kk in range(nkk):
                    self.rd[(op, kk, w)] = self.V_RD + n
                    n += 1
        self.V_TMP = (self.V_RD + n + 1) // 2 * 2
        self.LN_MASK = 15 if self.M16 else 31
        self.LM_SHIFT = 4 if self.M16 else 5

    def acc(self, mt, nt):
        return self.V_ACC + (mt * 2 + nt) * 16

    def accs(self, mt, nt):
        b = self.acc(mt, nt)
        return f"v[{b}:{b+15}]"

    def acc16(self, mi, ni):
        return self.V_ACC + ((mi >> 1) * 2 + (ni >> 1)) * 16 + ((mi & 1) * 2 + (ni & 1)) * 4

    def quads(self):
        out = []
        if self.M16:
            for mi in range(2 * self.MT):
                for ni in range(4):
                    out.append((self.acc16(mi, ni), mi * 16, ni * 16))
        else:
            for mt in range(self.MT):
                for nt in range(2):
                    for q in range(4):
                        out.append((self.acc(mt, nt) + 4 * q, mt * 32 + 8 * q, nt * 32))
        return out

    def setup_loader(self, a, rowP_s, rowQ_s, strideP, strideQ):
        t = 20
        rq = self.BM // 4
        a(f"""
        s_sub_u32 s{S_WOFF}, s{S_WAVE}, 4
        s_lshl_b32 s{S_WOFFQ}, s{S_WOFF}, 12
        s_mul_i32 s30, s{S_WOFF}, {rq}
        s_lshl_b32 s31, s{S_WOFF}, 5
        s_mul_i32 s{S_WOFF}, s{S_WOFF}, {rq*128}
        v_lshrrev_b32 v{t}, 3, v1
        v_and_b32 v{t+2}, 7, v1
        v_lshrrev_b32 v{t+3}, 4, v1
        v_xor_b32 v{t+2}, v{t+2}, v{t+3}
        """)
        for (vld, row_s, stride, n, sw) in ((self.V_LDP, rowP_s, strideP, self.NPI, 30), (self.V_LDQ, rowQ_s, strideQ, 4, 31)):
            sh = stride.bit_length() - 1
            assert 1 << sh == stride
            for i in range(n):
                a(f"v_add_u32 v{t+4}, s{row_s}, v{t}")
                a(f"v_add_u32 v{t+4}, s{sw}, v{t+4}")
                if i:
                    a(f"v_add_u32 v{t+4}, {8*i}, v{t+4}")
                a(f"v_lshlrev_b32 v{t+4}, {sh}, v{t+4}")
                if i & 1:
                    a(f"v_xor_b32 v{t+5}, 4, v{t+2}")
                else:
                    a(f"v_mov_b32 v{t+5}, v{t+2}")
                a(f"v_lshlrev_b32 v{t+5}, 4, v{t+5}")
                a(f"v_add_u32 v{vld+i}, v{t+4}, v{t+5}")
                if i & 3:
                    a(f"v_subrev_u32 v{vld+i}, {1024*(i&3)}, v{vld+i}")

    def setup_compute(self, a):
        t = self.V_TMP
        if self.M16:
            a(f"""
            v_and_b32 v{t}, 15, v1
            v_lshrrev_b32 v{t+1}, 4, v1
            v_lshrrev_b32 v{t+2}, 1, v{t}
            v_xor_b32 v{t+2}, v{t+2}, v{t+1}
            """)
        else:
            a(f"""
            v_and_b32 v{t}, 31, v1
            v_lshrrev_b32 v{t+1}, 5, v1
            v_lshrrev_b32 v{t+2}, 1, v1
            v_and_b32 v{t+2}, 7, v{t+2}
            v_xor_b32 v{t+2}, v{t+2}, v{t+1}
            """)
        a(f"""
        v_lshrrev_b32 v{t+3}, 1, v2
        v_mul_u32_u24 v{t+3}, {self.MT*32}, v{t+3}
        v_add_u32 v{t+3}, v{t+3}, v{t}
        v_lshlrev_b32 v{t+3}, 7, v{t+3}
        v_and_b32 v{t+4}, 1, v2
        v_lshlrev_b32 v{t+4}, 6, v{t+4}
        v_add_u32 v{t+4}, v{t+4}, v{t}
        v_lshlrev_b32 v{t+4}, 7, v{t+4}
        """)
        for (op, kk, w), r in self.rd.items():
            a(f"v_xor_b32 v{t+5}, {(4 if self.M16 else 2)*kk}, v{t+2}")
            a(f"v_lshlrev_b32 v{t+5}, 4, v{t+5}")
            a(f"v_add_u32 v{r}, v{t+3 if op == 'P' else t+4}, v{t+5}")
            if w:
                a(f"v_add_u32 v{r}, {w << 16}, v{r}")
        for i in range(self.MT * 32):
            a(f"v_mov_b32 v{self.V_ACC+i}, 0")

    def rdP16(self, a, dst, stage, kk, mh):
        for j in range(self.MT):
            off = stage * self.PSZ + (mh * self.MT + j) * 2048
            a(f"ds_read_b128 v[{dst+4*j}:{dst+4*j+3}], v{self.rd[('P', kk, off >> 16)]} offset:{off & 0xffff}")

    def rdQ16(self, a, dst, stage, kk):
        for j in range(4):
            off = self.QBASE + stage * self.QSZ + j * 2048
            a(f"ds_read_b128 v[{dst+4*j}:{dst+4*j+3}], v{self.rd[('Q', kk, off >> 16)]} offset:{off & 0xffff}")

    def mfma16(self, a, P, Q, mh):
        for j in range(self.MT):
            for ni in range(4):
                r = self.acc16(mh * self.MT + j, ni)
                a(f"v_mfma_f32_16x16x32_bf16 v[{r}:{r+3}], v[{P+4*j}:{P+4*j+3}], v[{Q+4*ni}:{Q+4*ni+3}], v[{r}:{r+3}]")

    def dma(self, a, stage):
        for i in range(self.NPI):
            if i % 4 == 0:
                a(f"s_add_u32 m0, s{S_WOFF}, {stage*self.PSZ + i*1024}")
                a("s_nop 0")
            a(f"buffer_load_dwordx4 v{self.V_LDP+i}, s[{S_SRDP}:{S_SRDP+3}], s{S_OFFP} offen offset:{1024*(i&3)} lds")
        a(f"s_add_u32 m0, s{S_WOFFQ}, {self.QBASE + stage*self.QSZ}")
        a("s_nop 0")
        for i in range(4):
            a(f"buffer_load_dwordx4 v{self.V_LDQ+i}, s[{S_SRDQ}:{S_SRDQ+3}], s{S_OFFQ} offen offset:{1024*i} lds")

    def reads(self, a, fset, stage, kk):
        for mt in range(self.MT):
            off = stage * self.PSZ + mt * 4096
            a(f"ds_read_b128 v[{fset+4*mt}:{fset+4*mt+3}], v{self.rd[('P', kk, off >> 16)]} offset:{off & 0xffff}")
        for nt in range(2):
            off = self.QBASE + stage * self.QSZ + nt * 4096
            qb = fset + 4 * self.MT + 4 * nt
            a(f"ds_read_b128 v[{qb}:{qb+3}], v{self.rd[('Q', kk, off >> 16)]} offset:{off & 0xffff}")

    def mfma(self, a, fset):
        for mt in range(self.MT):
            for nt in range(2):
                qb = fset + 4 * self.MT + 4 * nt
                if not OPT.get("nomfma"):
                    a(f"v_mfma_f32_32x32x16_bf16 {self.accs(mt,nt)}, v[{fset+4*mt}:{fset+4*mt+3}], v[{qb}:{qb+3}], {self.accs(mt,nt)}")

    def body(self, a, pfx, step_setup, rowP_s, rowQ_s, strideP, strideQ, tail=None, pre=None, filler=None):
        NS = self.NS
        nr = self.MT + 2
        a(f"""
        v_and_b32 v1, 63, v0
        v_lshrrev_b32 v2, 6, v0
        s_nop 0
        v_readfirstlane_b32 s{S_WAVE}, v2
        s_nop 3
        s_mov_b32 s{S_N}, 0
        s_cmp_lt_u32 s{S_WAVE}, 4
        s_cbranch_scc1 {pfx}_compute
        """)

        self.setup_loader(a, rowP_s, rowQ_s, strideP, strideQ)
        for st in range(NS - 1):
            step_setup(a)
            self.dma(a, st)
        a(f"""
        s_waitcnt vmcnt({(NS-2)*self.NDMA})
        s_barrier
        """)
        a.label(f"{pfx}_lloop")
        for u in range(NS):
            a(f"s_cmp_ge_u32 s{S_JL}, s{S_JEND}")
            a(f"s_cbranch_scc1 {pfx}_lskip{u}")
            step_setup(a)
            self.dma(a, (u + NS - 1) % NS)
            a(f"s_waitcnt vmcnt({(NS-2)*self.NDMA})")
            a(f"s_branch {pfx}_lbar{u}")
            a.label(f"{pfx}_lskip{u}")
            a("s_waitcnt vmcnt(0)")
            a.label(f"{pfx}_lbar{u}")
            a("s_barrier")
            a(f"s_add_u32 s{S_N}, s{S_N}, 1")
            a(f"s_cmp_ge_u32 s{S_N}, s{S_NEND}")
            if u < NS - 1:
                a(f"s_cbranch_scc1 {pfx}_ldone")
            else:
                a(f"s_cbranch_scc0 {pfx}_lloop")
        a.label(f"{pfx}_ldone")
        a("s_endpgm")
        a.label(f"{pfx}_compute")
        self.setup_compute(a)
        if pre:
            pre(a)
        a("s_barrier")
        if OPT.get("stamp"):
            a("s_memtime s[60:61]")
            a("s_memrealtime s[62:63]")
            a("s_memrealtime s[76:77]")
            a("s_waitcnt lgkmcnt(0)")
        MT = self.MT
        if self.M16:
            self.rdP16(a, self.PA, 0, 0, 0)
            self.rdQ16(a, self.QA, 0, 0)
        else:
            self.reads(a, self.V_FA, 0, 0)
        a.label(f"{pfx}_loop")
        for u in range(NS):
            if self.M16:
                self.rdP16(a, self.PB, u, 0, 1)
                a(f"s_waitcnt lgkmcnt({MT})")
                self.mfma16(a, self.PA, self.QA, 0)
                if filler:
                    filler(a)
                self.rdP16(a, self.PA, u, 1, 0)
                self.rdQ16(a, self.QB, u, 1)
                a(f"s_waitcnt lgkmcnt({MT+4})")
                self.mfma16(a, self.PB, self.QA, 1)
                self.rdP16(a, self.PB, u, 1, 1)
                a(f"s_waitcnt lgkmcnt({MT})")
                self.mfma16(a, self.PA, self.QB, 0)
                if filler:
                    filler(a)
                a("s_waitcnt lgkmcnt(0)")
                a("s_barrier")
                self.rdP16(a, self.PA, (u + 1) % NS, 0, 0)
                self.rdQ16(a, self.QA, (u + 1) % NS, 0)
                self.mfma16(a, self.PB, self.QB, 1)
            else:
                self.reads(a, self.V_FB, u, 1)
                a(f"s_waitcnt lgkmcnt({nr})")
                self.mfma(a, self.V_FA)
                if filler:
                    filler(a)
                self.reads(a, self.V_FA, u, 2)
                a(f"s_waitcnt lgkmcnt({nr})")
                self.mfma(a, self.V_FB)
                self.reads(a, self.V_FB, u, 3)
                a(f"s_waitcnt lgkmcnt({nr})")
                self.mfma(a, self.V_FA)
                if filler:
                    filler(a)
                a("s_waitcnt lgkmcnt(0)")
                a("s_barrier")
                self.reads(a, self.V_FA, (u + 1) % NS, 0)
                self.mfma(a, self.V_FB)
            a(f"s_add_u32 s{S_N}, s{S_N}, 1")
            a(f"s_cmp_ge_u32 s{S_N}, s{S_NEND}")
            if u < NS - 1:
                a(f"s_cbranch_scc1 {pfx}_done")
            else:
                a(f"s_cbranch_scc0 {pfx}_loop")
        a.label(f"{pfx}_done")
        a("s_waitcnt lgkmcnt(0)")
        a("s_nop 15")
        if OPT.get("stamp"):
            T = self.V_TMP
            a("s_memtime s[64:65]")
            a("s_memrealtime s[66:67]")
            a("s_memrealtime s[78:79]")
            a("s_waitcnt lgkmcnt(0)")
            srd(a, 68, 44, (60 << 20) + (0 if pfx == "L_g1" else (1 << 20)), 1 << 20)
            a(f"""
            s_lshl_b32 s72, s2, 3
            s_add_u32 s72, s72, s{S_WAVE}
            s_lshl_b32 s72, s72, 5
            v_mov_b32 v{T}, 0
            """)
            for i in range(8):
                a(f"v_mov_b32 v{T+1}, s{60+i}")
                a(f"buffer_store_dword v{T+1}, v{T}, s[68:71], s72 offen offset:{4*i}")


G1 = None
G1_WGS = 240


def gen_gemm1(a):
    global G1
    C = G1 = Core(4, 3)
    name = "gemm1_kernel"
    kernel_begin(a, name)
    a(f"""
    s_cmp_ge_u32 s2, {G1_WGS}
    s_cbranch_scc1 L_g1_end
    {"s_memrealtime s[74:75]" if OPT.get("stamp") else ""}
    s_cmp_ge_u32 s2, 240
    s_cbranch_scc1 L_g1_pf
    s_load_dwordx4 s[40:43], s[0:1], {KA_WDRE}
    s_load_dwordx2 s[44:45], s[0:1], {KA_WS}
    s_waitcnt lgkmcnt(0)
    s_cmp_ge_u32 s2, 64
    s_cbranch_scc1 L_g1_ffn
    """)
    srd(a, S_SRDP, 44, WS_XN, 2048 * 1024)
    a("""
    s_lshr_b32 s21, s2, 3
    s_and_b32 s24, s2, 7
    s_lshl_b32 s24, s24, 8
    s_cmp_ge_u32 s21, 4
    s_cselect_b64 s[46:47], s[42:43], s[40:41]
    s_and_b32 s25, s21, 3
    s_lshl_b32 s25, s25, 7
    """)
    srd(a, S_SRDQ, 46, 0, 512 * 1024)
    a("s_branch L_g1_main")
    a.label("L_g1_ffn")
    srd(a, S_SRDP, 44, WS_WGU, 2816 * 1024)
    srd(a, S_SRDQ, 44, WS_XN, 2048 * 1024)
    a("""
    s_sub_u32 s23, s2, 64
    s_and_b32 s25, s23, 15
    s_lshl_b32 s25, s25, 7
    s_lshr_b32 s24, s23, 4
    s_lshl_b32 s24, s24, 8
    s_mov_b32 s21, 8
    """)
    a.label("L_g1_main")
    a(f"""
    s_mov_b32 s26, s{S_SRDP+2}
    s_mov_b32 s27, s{S_SRDQ+2}
    s_mov_b32 s{S_JL}, 0
    s_mov_b32 s{S_JEND}, 8
    s_mov_b32 s{S_NEND}, 8
    """)

    def step_setup(a):
        a(f"""
        s_lshl_b32 s{S_OFFP}, s{S_JL}, 7
        s_mov_b32 s{S_OFFQ}, s{S_OFFP}
        s_cmp_lt_u32 s{S_JL}, s{S_JEND}
        s_cselect_b32 s{S_SRDP+2}, s26, 0
        s_cselect_b32 s{S_SRDQ+2}, s27, 0
        s_add_u32 s{S_JL}, s{S_JL}, 1
        """)

    PFV = C.V_TMP + 12

    def pre(a):
        a(f"""
        s_load_dwordx4 s[48:51], s[0:1], {KA_WSRE}
        s_lshl_b32 s38, s2, 2
        s_add_u32 s38, s38, s{S_WAVE}
        s_lshl_b32 s38, s38, 10
        v_lshlrev_b32 v{PFV+8}, 4, v1
        s_waitcnt lgkmcnt(0)
        """)
        srd(a, 52, 48, 0, 2048 * 4096)
        srd(a, 56, 50, 0, 2048 * 4096)

    def filler(a):
        a(f"buffer_load_dwordx4 v[{PFV}:{PFV+3}], v{PFV+8}, s[52:55], s38 offen")
        a(f"buffer_load_dwordx4 v[{PFV+4}:{PFV+7}], v{PFV+8}, s[56:59], s38 offen")
        a(f"s_add_u32 s38, s38, {960*1024}")

    if OPT.get("pf", 0) == 2:
        C.body(a, "L_g1", step_setup, 24, 25, 1024, 1024, None, pre, filler)
    else:
        C.body(a, "L_g1", step_setup, 24, 25, 1024, 1024)
    t = C.V_TMP
    a(f"""
    v_and_b32 v{t}, {C.LN_MASK}, v1
    v_lshrrev_b32 v{t+1}, {C.LM_SHIFT}, v1
    s_lshr_b32 s28, s{S_WAVE}, 1
    s_and_b32 s29, s{S_WAVE}, 1
    s_cmp_ge_u32 s21, 8
    s_cbranch_scc1 L_g1_epi_ffn
    """)
    RS = 272
    a(f"""
    s_lshr_b32 s30, s21, 2
    s_lshl_b32 s30, s30, 21
    s_add_u32 s30, s30, {WS_B}
    s_add_u32 s32, s44, s30
    s_addc_u32 s33, s45, 0
    s_mov_b32 s34, {512*4096}
    s_mov_b32 s35, 0x00020000
    s_mul_i32 s36, s{S_WAVE}, {64*RS}
    v_mul_u32_u24 v{t+2}, {RS}, v{t}
    v_lshlrev_b32 v{t+3}, 3, v{t+1}
    v_add3_u32 v{t+2}, v{t+2}, v{t+3}, s36
    s_cmp_ge_u32 s21, 4
    s_cselect_b32 s31, 0x80008000, 0
    s_barrier
    """)
    k = 0
    for (b, moff, noff) in C.quads():
        r = t + 4 + 2 * (k % 4)
        k += 1
        a(f"v_cvt_pk_bf16_f32 v{r}, v{b}, v{b+1}")
        a(f"v_cvt_pk_bf16_f32 v{r+1}, v{b+2}, v{b+3}")
        a(f"v_xor_b32 v{r}, s31, v{r}")
        a(f"v_xor_b32 v{r+1}, s31, v{r+1}")
        a(f"ds_write_b64 v{t+2}, v[{r}:{r+1}] offset:{noff*RS + moff*2}")
    a(f"""
    v_lshrrev_b32 v{t+3}, 4, v1
    v_and_b32 v{t+4}, 15, v1
    v_lshlrev_b32 v{t+4}, 4, v{t+4}
    v_mul_u32_u24 v{t+5}, {RS}, v{t+3}
    v_add3_u32 v{t+5}, v{t+5}, v{t+4}, s36
    v_lshlrev_b32 v{t+3}, 12, v{t+3}
    v_add_u32 v{t+3}, v{t+3}, v{t+4}
    s_lshl_b32 s30, s29, 6
    s_add_u32 s30, s30, s25
    s_lshl_b32 s30, s30, 12
    s_lshl_b32 s37, s28, 7
    s_add_u32 s37, s37, s24
    s_lshl_b32 s37, s37, 1
    s_add_u32 s30, s30, s37
    s_waitcnt lgkmcnt(0)
    """)
    for i in range(16):
        a(f"ds_read_b128 v[{C.V_ACC+4*i}:{C.V_ACC+4*i+3}], v{t+5} offset:{i*4*RS}")
    for i in range(16):
        a(f"s_waitcnt lgkmcnt({15-i})")
        a(f"buffer_store_dwordx4 v[{C.V_ACC+4*i}:{C.V_ACC+4*i+3}], v{t+3}, s[32:35], s30 offen")
        a("s_add_u32 s30, s30, 0x4000")
    if OPT.get("stamp"):
        stamp(a, 3)
        a("s_waitcnt vmcnt(0)")
        stamp(a, 4)
        stamp_flush(a, "L_g1", t + 4)
    a("s_endpgm")
    a.label("L_g1_epi_ffn")
    srd(a, 32, 44, WS_H, 2048 * 4096)
    c0 = -2.0 * 0.7978845608028654 * 1.4426950408889634
    c1 = c0 * 0.044715
    RS2 = 144
    a(f"""
    s_mul_i32 s36, s{S_WAVE}, {64*RS2}
    v_mul_u32_u24 v{t+2}, {RS2}, v{t}
    v_lshlrev_b32 v{t+3}, 3, v{t+1}
    v_add3_u32 v{t+2}, v{t+2}, v{t+3}, s36
    v_mov_b32 v{t+4}, 0x{f32bits(c0):08x}
    v_mov_b32 v{t+5}, 0x{f32bits(c0):08x}
    v_mov_b32 v{t+10}, 0x{f32bits(c1):08x}
    v_mov_b32 v{t+11}, 0x{f32bits(c1):08x}
    s_barrier
    """)
    k = 0
    qd = {(m, n): r for (r, m, n) in C.quads()}
    for (G0, moff, noff) in C.quads():
        if moff % 64 >= 32:
            continue
        U0 = qd[(moff + 32, noff)]
        foff = (moff // 64) * 32 + moff % 64
        for _once in range(1):
            for _once2 in range(1):
                g = 4 + 8 * (k % 2)
                o = t + 6 + 2 * (k % 2)
                k += 1
                for p in range(2):
                    a(f"v_pk_mul_f32 v[{g+2*p}:{g+2*p+1}], v[{G0+2*p}:{G0+2*p+1}], v[{G0+2*p}:{G0+2*p+1}]")
                for p in range(2):
                    a(f"v_pk_fma_f32 v[{g+2*p}:{g+2*p+1}], v[{g+2*p}:{g+2*p+1}], v[{t+10}:{t+11}], v[{t+4}:{t+5}]")
                for p in range(2):
                    a(f"v_pk_mul_f32 v[{g+2*p}:{g+2*p+1}], v[{g+2*p}:{g+2*p+1}], v[{G0+2*p}:{G0+2*p+1}]")
                for r in range(4):
                    a(f"v_exp_f32 v{g+r}, v{g+r}")
                for p in range(2):
                    a(f"v_pk_mul_f32 v[{g+4+2*p}:{g+4+2*p+1}], v[{G0+2*p}:{G0+2*p+1}], v[{U0+2*p}:{U0+2*p+1}]")
                for p in range(2):
                    a(f"v_pk_add_f32 v[{g+2*p}:{g+2*p+1}], v[{g+2*p}:{g+2*p+1}], 1.0 op_sel_hi:[1,0]")
                for r in range(4):
                    a(f"v_rcp_f32 v{g+r}, v{g+r}")
                a("s_nop 0")
                for p in range(2):
                    a(f"v_pk_mul_f32 v[{g+2*p}:{g+2*p+1}], v[{g+2*p}:{g+2*p+1}], v[{g+4+2*p}:{g+4+2*p+1}]")
                a(f"v_cvt_pk_bf16_f32 v{o}, v{g}, v{g+1}")
                a(f"v_cvt_pk_bf16_f32 v{o+1}, v{g+2}, v{g+3}")
                a(f"ds_write_b64 v{t+2}, v[{o}:{o+1}] offset:{noff*RS2 + foff*2}")
    a(f"""
    v_lshrrev_b32 v{t+3}, 3, v1
    v_and_b32 v{t+4}, 7, v1
    v_lshlrev_b32 v{t+4}, 4, v{t+4}
    v_mul_u32_u24 v{t+5}, {RS2}, v{t+3}
    v_add3_u32 v{t+5}, v{t+5}, v{t+4}, s36
    v_lshlrev_b32 v{t+3}, 12, v{t+3}
    v_add_u32 v{t+3}, v{t+3}, v{t+4}
    s_lshl_b32 s30, s29, 6
    s_add_u32 s30, s30, s25
    s_lshl_b32 s30, s30, 12
    s_lshl_b32 s37, s28, 7
    s_add_u32 s37, s37, s24
    s_add_u32 s30, s30, s37
    s_waitcnt lgkmcnt(0)
    """)
    for i in range(8):
        a(f"ds_read_b128 v[{C.V_ACC+4*i}:{C.V_ACC+4*i+3}], v{t+5} offset:{i*8*RS2}")
    for i in range(8):
        a(f"s_waitcnt lgkmcnt({7-i})")
        a(f"buffer_store_dwordx4 v[{C.V_ACC+4*i}:{C.V_ACC+4*i+3}], v{t+3}, s[32:35], s30 offen")
        a("s_add_u32 s30, s30, 0x8000")
    if OPT.get("stamp"):
        stamp(a, 3)
        a("s_waitcnt vmcnt(0)")
        stamp(a, 4)
        stamp_flush(a, "L_g1", t + 6)
    a("s_endpgm")
    a.label("L_g1_pf")
    a(f"""
    s_load_dwordx4 s[48:51], s[0:1], {KA_WSRE}
    v_and_b32 v1, 63, v0
    v_lshrrev_b32 v2, 6, v0
    s_nop 0
    v_readfirstlane_b32 s3, v2
    s_sub_u32 s38, s2, 240
    s_lshl_b32 s38, s38, 3
    s_nop 2
    s_add_u32 s38, s38, s3
    s_lshl_b32 s38, s38, 16
    v_lshlrev_b32 v3, 4, v1
    s_mov_b32 s39, 0
    s_waitcnt lgkmcnt(0)
    """)
    srd(a, 52, 48, 0, 2048 * 4096)
    srd(a, 56, 50, 0, 2048 * 4096)
    a.label("L_g1_pfl")
    for i in range(4):
        a(f"buffer_load_dwordx4 v[{4+8*i}:{7+8*i}], v3, s[52:55], s38 offen offset:{1024*i}")
        a(f"buffer_load_dwordx4 v[{8+8*i}:{11+8*i}], v3, s[56:59], s38 offen offset:{1024*i}")
    a("""
    s_add_u32 s38, s38, 4096
    s_add_u32 s39, s39, 1
    s_cmp_lt_u32 s39, 16
    s_cbranch_scc1 L_g1_pfl
    """)
    a.label("L_g1_end")
    a("s_endpgm")
    return kernel_desc(name, C.V_TMP + 24)


G2 = None
G2_WGS = 256


def gen_gemm2(a):
    global G2
    C = G2 = Core(2, 4)
    name = "gemm2_kernel"
    kernel_begin(a, name)
    a(f"""
    s_cmp_ge_u32 s2, {G2_WGS}
    s_cbranch_scc1 L_g2_end
    {"s_memrealtime s[74:75]" if OPT.get("stamp") else ""}
    s_load_dwordx4 s[40:43], s[0:1], {KA_WSRE}
    s_load_dwordx2 s[44:45], s[0:1], {KA_WS}
    s_load_dwordx2 s[48:49], s[0:1], {KA_X}
    s_load_dwordx4 s[52:55], s[0:1], {KA_OUT}
    s_and_b32 s23, s2, 3
    s_lshr_b32 s20, s2, 2
    s_and_b32 s20, s20, 1
    s_lshl_b32 s20, s20, 3
    s_lshr_b32 s21, s2, 3
    s_and_b32 s22, s21, 7
    s_add_u32 s20, s20, s22
    s_lshr_b32 s22, s21, 3
    s_mul_i32 s{S_JL}, s23, 86
    s_add_u32 s{S_JEND}, s{S_JL}, 86
    s_lshr_b32 s{S_JL}, s{S_JL}, 2
    s_lshr_b32 s{S_JEND}, s{S_JEND}, 2
    s_sub_u32 s{S_NEND}, s{S_JEND}, s{S_JL}
    s_lshl_b32 s24, s22, 7
    s_lshl_b32 s25, s20, 7
    s_waitcnt lgkmcnt(0)
    """)
    srd(a, S_SRDP, 44, WS_B, 3 * 512 * 4096)
    a(f"""
    s_add_u32 s46, s44, {WS_H}
    s_addc_u32 s47, s45, 0
    s_mov_b32 s{S_SRDQ+3}, 0x00020000
    """)

    def step_setup(a):
        a(f"""
        s_lshr_b32 s26, s{S_JL}, 5
        s_and_b32 s{S_OFFQ}, s{S_JL}, 31
        s_lshl_b32 s{S_OFFQ}, s{S_OFFQ}, 7
        s_lshl_b32 s27, s26, 21
        s_add_u32 s{S_OFFP}, s{S_OFFQ}, s27
        s_cmp_eq_u32 s26, 0
        s_cselect_b64 s[{S_SRDQ}:{S_SRDQ+1}], s[40:41], s[42:43]
        s_cmp_ge_u32 s26, 2
        s_cselect_b64 s[{S_SRDQ}:{S_SRDQ+1}], s[46:47], s[{S_SRDQ}:{S_SRDQ+1}]
        s_cmp_lt_u32 s{S_JL}, s{S_JEND}
        s_cselect_b32 s{S_SRDP+2}, {3*512*4096}, 0
        s_cselect_b32 s{S_SRDQ+2}, {2048*4096}, 0
        s_add_u32 s{S_JL}, s{S_JL}, 1
        """)

    C.body(a, "L_g2", step_setup, 24, 25, 4096, 4096)
    t = C.V_TMP
    srd(a, 32, 44, WS_PART, 64 * 16 * 8192)
    a(f"""
    s_lshl_b32 s28, s20, 2
    s_add_u32 s28, s28, s22
    s_lshl_b32 s31, s{S_WAVE}, 11
    v_lshlrev_b32 v{t}, 4, v1
    """)
    for tl in range(4):
        a(f"""
        s_cmp_eq_u32 s23, {tl}
        s_cbranch_scc1 L_g2_pub{tl}
        s_lshl_b32 s30, s28, 2
        s_add_u32 s30, s30, {tl}
        s_lshl_b32 s30, s30, 2
        s_add_u32 s30, s30, s23
        s_lshl_b32 s30, s30, 13
        s_add_u32 s30, s30, s31
        """)
        b = C.V_ACC + tl * 16
        r = t + 4 + 8 * (tl & 1)
        for i in range(8):
            a(f"v_cvt_pk_bf16_f32 v{r+i}, v{b+2*i}, v{b+2*i+1}")
        a(f"buffer_store_dwordx4 v[{r}:{r+3}], v{t}, s[32:35], s30 offen sc1")
        a(f"buffer_store_dwordx4 v[{r+4}:{r+7}], v{t}, s[32:35], s30 offen offset:1024 sc1")
        a.label(f"L_g2_pub{tl}")
    srd(a, 56, 54, 0, 256)
    a("s_waitcnt vmcnt(0)")
    stamp(a, 3)
    a(f"""
    s_barrier
    s_cmp_lg_u32 s{S_WAVE}, 0
    s_cbranch_scc1 L_g2_wait
    s_lshl_b32 s29, s28, 2
    v_mov_b32 v{t+1}, 1
    v_mov_b32 v{t+2}, 0
    s_mov_b64 s[60:61], exec
    s_mov_b64 exec, 1
    buffer_atomic_add v{t+1}, v{t+2}, s[56:59], s29 offen
    """)
    a.label("L_g2_spin")
    a(f"""
    buffer_load_dword v{t+1}, v{t+2}, s[56:59], s29 offen sc1
    s_waitcnt vmcnt(0)
    v_readfirstlane_b32 s30, v{t+1}
    s_nop 3
    s_cmp_ge_u32 s30, 4
    s_cbranch_scc1 L_g2_spun
    s_sleep 1
    s_branch L_g2_spin
    """)
    a.label("L_g2_spun")
    a("s_mov_b64 exec, s[60:61]")
    a.label("L_g2_wait")
    a("s_barrier")
    stamp(a, 4)
    srd(a, 60, 48, 0, 2048 * 1024)
    srd(a, 64, 52, 0, 2048 * 1024)
    L = t + 4
    X = L + 24
    QOFF = [(n % 32) * 1024 + (m % 32) * 2 for (r, m, n) in sorted(C.quads()) if r < C.V_ACC + 16]
    assert len(QOFF) == 4 and max(QOFF) < 32768
    a(f"""
    s_and_b32 s36, s{S_WAVE}, 1
    s_lshl_b32 s36, s36, 1
    s_and_b32 s37, s23, 1
    s_add_u32 s36, s36, s37
    s_lshl_b32 s36, s36, 5
    s_add_u32 s36, s36, s25
    s_lshr_b32 s37, s{S_WAVE}, 1
    s_lshl_b32 s37, s37, 1
    s_lshr_b32 s38, s23, 1
    s_add_u32 s37, s37, s38
    s_lshl_b32 s37, s37, 5
    s_add_u32 s37, s37, s24
    v_and_b32 v{t+1}, {C.LN_MASK}, v1
    v_add_u32 v{t+1}, s36, v{t+1}
    v_lshlrev_b32 v{t+1}, 10, v{t+1}
    v_lshrrev_b32 v{t+2}, {C.LM_SHIFT}, v1
    v_lshlrev_b32 v{t+2}, 2, v{t+2}
    v_add_u32 v{t+2}, s37, v{t+2}
    v_lshlrev_b32 v{t+2}, 1, v{t+2}
    v_add_u32 v{t+1}, v{t+1}, v{t+2}
    s_lshl_b32 s38, s28, 2
    s_add_u32 s38, s38, s23
    s_lshl_b32 s38, s38, 2
    """)
    for i in range(1, 4):
        a(f"""
        s_add_u32 s30, s23, {i}
        s_and_b32 s30, s30, 3
        s_add_u32 s30, s30, s38
        s_lshl_b32 s30, s30, 13
        s_add_u32 s30, s30, s31
        """)
        r = L + (i - 1) * 8
        a(f"buffer_load_dwordx4 v[{r}:{r+3}], v{t}, s[32:35], s30 offen sc1")
        a(f"buffer_load_dwordx4 v[{r+4}:{r+7}], v{t}, s[32:35], s30 offen offset:1024 sc1")
    a("s_mov_b32 s36, 0")
    a("s_mov_b32 s37, 0x4000")
    for q in range(4):
        a(f"buffer_load_dwordx2 v[{X+2*q}:{X+2*q+1}], v{t+1}, s[60:63], s{36 + QOFF[q] // 16384} offen offset:{QOFF[q] % 16384}")
    for tl in range(3):
        a(f"s_cmp_eq_u32 s23, {tl}")
        a(f"s_cbranch_scc1 L_g2_fin{tl}")
    for tl in (3, 0, 1, 2):
        if tl != 3:
            a.label(f"L_g2_fin{tl}")
        a("s_waitcnt vmcnt(0)")
        b = C.V_ACC + tl * 16
        for src in list(range(3)) + ["x"]:
            for i in range(8):
                rr = (L + src * 8 + i) if src != "x" else X + i
                a(f"v_lshlrev_b32 v{t+2}, 16, v{rr}")
                a(f"v_and_b32 v{t+3}, 0xffff0000, v{rr}")
                a(f"v_add_f32 v{b+2*i}, v{b+2*i}, v{t+2}")
                a(f"v_add_f32 v{b+2*i+1}, v{b+2*i+1}, v{t+3}")
        for q in range(4):
            a(f"v_cvt_pk_bf16_f32 v{X+2*q}, v{b+4*q}, v{b+4*q+1}")
            a(f"v_cvt_pk_bf16_f32 v{X+2*q+1}, v{b+4*q+2}, v{b+4*q+3}")
            a(f"buffer_store_dwordx2 v[{X+2*q}:{X+2*q+1}], v{t+1}, s[64:67], s{36 + QOFF[q] // 16384} offen offset:{QOFF[q] % 16384}")
        if OPT.get("stamp"):
            a("s_waitcnt vmcnt(0)")
            stamp(a, 5)
            stamp_flush(a, "L_g2", t + 2)
        a("s_endpgm")
    a.label("L_g2_end")
    a("s_endpgm")
    return kernel_desc(name, X + 8)


def main():
    global ARGS
    ARGS = [x for x in sys.argv[1:] if "=" not in x]
    for x in sys.argv[1:]:
        if "=" in x:
            k, v = x.split("=")
            OPT[k] = int(v)
    hdr = open("cdna_kernels/" + NAME + ".s.ref").read().split("\n")
    top = [l for l in hdr if l.startswith(";") and "@launch" not in l and "Override" not in l and "grid=ceil" not in l]
    a = Asm()
    descs = []
    a.raw('.amdgcn_target "amdgcn-amd-amdhsa--gfx950"')
    a.raw(".text")
    descs.append(gen_prep(a))
    descs.append(gen_gemm1(a))
    descs.append(gen_gemm2(a))
    out = "\n".join(top) + "\n"
    out += f"; @launch kernel=prep_kernel grid=({PREP_WGS},1,1) block=(256,1,1) lds=0\n"
    out += f"; @launch kernel=gemm1_kernel grid=({G1_WGS},1,1) block=(512,1,1) lds={G1.LDS}\n"
    out += f"; @launch kernel=gemm2_kernel grid=({G2_WGS},1,1) block=(512,1,1) lds={G2.LDS}\n"
    for i in range(OPT.get("dummy", 0)):
        out += f"; @launch kernel=dummy_kernel grid=(1,1,1) block=(64,1,1) lds=0\n"
    if OPT.get("dummy", 0):
        kernel_begin(a, "dummy_kernel")
        a("s_endpgm")
        descs.append(kernel_desc("dummy_kernel", 8))
    out += a.text()
    out += '.section .rodata,"a"\n'
    for d in descs:
        out += ".p2align 6\n" + d
    path = ARGS[0] if ARGS else "cdna_kernels/" + NAME + ".s"
    open(path, "w").write(out)


if __name__ == "__main__":
    main()
```

```python
import struct
import sys

NAME = "parallel_sum__spectral_fnet__geglu_ffn__prompt"
OPT = {}

WS_XN = 0
WS_WGU = 2 << 20
WS_B = 8 << 20
WS_H = 16 << 20
WS_PART = 32 << 20
WS_SIZE = 268435456

KA_X, KA_WSRE, KA_WSIM, KA_WDRE, KA_WDIM, KA_BX, KA_WG, KA_WU, KA_WDN, KA_OUT, KA_DBG, KA_WS = [8 * i for i in range(12)]


def f32bits(x):
    return struct.unpack("<I", struct.pack("<f", x))[0]


class Asm:
    def __init__(self):
        self.lines = []

    def __call__(self, s):
        for ln in s.strip("\n").split("\n"):
            self.lines.append("    " + ln.strip())

    def label(self, s):
        self.lines.append(s + ":")

    def raw(self, s):
        self.lines.append(s)

    def text(self):
        return "\n".join(self.lines) + "\n"


def kernel_begin(a, name):
    a.raw(f".globl {name}")
    a.raw(".p2align 8")
    a.raw(f".type {name},@function")
    a.label(name)


def kernel_desc(name, vgpr, sgpr=96):
    acc = (vgpr + 3) // 4 * 4
    return f""".amdhsa_kernel {name}
  .amdhsa_next_free_vgpr {vgpr}
  .amdhsa_next_free_sgpr {sgpr}
  .amdhsa_accum_offset {acc}
  .amdhsa_group_segment_fixed_size 0
  .amdhsa_kernarg_size 96
  .amdhsa_user_sgpr_count 2
  .amdhsa_user_sgpr_kernarg_segment_ptr 1
  .amdhsa_system_sgpr_workgroup_id_x 1
  .amdhsa_float_denorm_mode_32 3
.end_amdhsa_kernel
"""


def srd(a, d, base, off, size):
    if off:
        a(f"s_add_u32 s{d}, s{base}, {off}")
        a(f"s_addc_u32 s{d+1}, s{base+1}, 0")
    else:
        a(f"s_mov_b32 s{d}, s{base}")
        a(f"s_mov_b32 s{d+1}, s{base+1}")
    a(f"s_mov_b32 s{d+2}, {size}")
    a(f"s_mov_b32 s{d+3}, 0x00020000")


N_LN = 2048
N_WGU = 22 * 64
N_WD = 8 * 176
N_PF = 0
PREP_WGS = 0


def gen_prep(a):
    global N_PF, PREP_WGS
    N_PF = 1024 if OPT.get("pf", 0) == 1 else 0
    PREP_WGS = (N_LN + N_WGU + N_WD + N_PF) // 4
    name = "prep_kernel"
    kernel_begin(a, name)
    PSTAMP = ""
    if OPT.get("stamp"):
        PSTAMP = f"""
    s_memrealtime s[40:41]
    s_add_u32 s44, s14, {59 << 20}
    s_addc_u32 s45, s15, 0
    s_mov_b32 s46, 65536
    s_mov_b32 s47, 0x00020000
    s_lshl_b32 s48, s16, 2
    s_waitcnt lgkmcnt(0)
    v_mov_b32 v30, s40
    v_mov_b32 v31, 0
    buffer_store_dword v30, v31, s[44:47], s48 offen
    """
    a(f"""
    s_cmp_ge_u32 s2, {PREP_WGS}
    s_cbranch_scc1 L_prep_end
    s_load_dwordx2 s[4:5], s[0:1], {KA_X}
    s_load_dwordx4 s[8:11], s[0:1], {KA_WG}
    s_load_dwordx2 s[12:13], s[0:1], {KA_WDN}
    s_load_dwordx2 s[14:15], s[0:1], {KA_WS}
    v_lshrrev_b32 v1, 6, v0
    v_and_b32 v2, 63, v0
    s_nop 0
    v_readfirstlane_b32 s3, v1
    s_lshl_b32 s16, s2, 2
    s_nop 3
    s_add_u32 s16, s16, s3
    s_waitcnt lgkmcnt(0)
    {PSTAMP}
    s_cmp_lt_u32 s16, {N_PF}
    s_cbranch_scc1 L_prep_pf
    s_sub_u32 s16, s16, {N_PF}
    s_cmp_ge_u32 s16, {N_LN}
    s_cbranch_scc1 L_prep_wgu
    """)
    srd(a, 20, 4, 0, 2048 * 1024)
    srd(a, 24, 14, WS_XN, 2048 * 1024)
    a("""
    s_lshl_b32 s17, s16, 10
    v_lshlrev_b32 v3, 4, v2
    buffer_load_dwordx4 v[4:7], v3, s[20:23], s17 offen
    v_lshlrev_b32 v30, 2, v2
    v_xor_b32 v31, 4, v30
    v_xor_b32 v32, 8, v30
    v_xor_b32 v33, 16, v30
    v_xor_b32 v34, 32, v30
    v_xor_b32 v35, 64, v30
    v_xor_b32 v36, 128, v30
    s_waitcnt vmcnt(0)
    """)
    for i in range(4):
        a(f"v_lshlrev_b32 v{8+2*i}, 16, v{4+i}")
        a(f"v_and_b32 v{9+2*i}, 0xffff0000, v{4+i}")
    a("""
    v_add_f32 v16, v8, v9
    v_add_f32 v17, v10, v11
    v_add_f32 v18, v12, v13
    v_add_f32 v19, v14, v15
    v_add_f32 v16, v16, v17
    v_add_f32 v18, v18, v19
    v_add_f32 v16, v16, v18
    """)
    for r in range(31, 37):
        a(f"""
        ds_bpermute_b32 v17, v{r}, v16
        s_waitcnt lgkmcnt(0)
        v_add_f32 v16, v16, v17
        """)
    a(f"v_mul_f32 v16, 0x{f32bits(1.0/512):08x}, v16")
    for i in range(8):
        a(f"v_sub_f32 v{20+i}, v{8+i}, v16")
    a("v_mul_f32 v17, v20, v20")
    for i in range(1, 8):
        a(f"v_fmac_f32 v17, v{20+i}, v{20+i}")
    for r in range(31, 37):
        a(f"""
        ds_bpermute_b32 v18, v{r}, v17
        s_waitcnt lgkmcnt(0)
        v_add_f32 v17, v17, v18
        """)
    a(f"""
    v_mul_f32 v17, 0x{f32bits(1.0/512):08x}, v17
    v_cvt_pk_bf16_f32 v18, v16, v17
    v_lshlrev_b32 v16, 16, v18
    v_and_b32 v17, 0xffff0000, v18
    v_add_f32 v17, 0x{f32bits(1e-5):08x}, v17
    v_cvt_pk_bf16_f32 v18, v17, v17
    v_lshlrev_b32 v17, 16, v18
    v_sqrt_f32 v17, v17
    s_nop 0
    v_cvt_pk_bf16_f32 v18, v17, v17
    v_lshlrev_b32 v17, 16, v18
    v_rcp_f32 v19, v17
    """)
    for i in range(8):
        a(f"v_sub_f32 v{20+i}, v{8+i}, v16")
    for i in range(4):
        a(f"v_cvt_pk_bf16_f32 v{4+i}, v{20+2*i}, v{21+2*i}")
    for i in range(4):
        a(f"v_lshlrev_b32 v{8+2*i}, 16, v{4+i}")
        a(f"v_and_b32 v{9+2*i}, 0xffff0000, v{4+i}")
    for i in range(8):
        a(f"v_mul_f32 v{20+i}, v{8+i}, v19")
    for i in range(8):
        a(f"v_fma_f32 v{8+i}, -v{20+i}, v17, v{8+i}")
    for i in range(8):
        a(f"v_fmac_f32 v{20+i}, v{8+i}, v19")
    for i in range(4):
        a(f"v_cvt_pk_bf16_f32 v{4+i}, v{20+2*i}, v{21+2*i}")
    a("""
    buffer_store_dwordx4 v[4:7], v3, s[24:27], s17 offen
    s_endpgm
    """)
    a.label("L_prep_wgu")
    a(f"""
    s_cmp_ge_u32 s16, {N_LN + N_WGU}
    s_cbranch_scc1 L_prep_wd
    s_sub_u32 s16, s16, {N_LN}
    s_lshr_b32 s17, s16, 6
    s_and_b32 s18, s16, 63
    """)
    srd(a, 20, 8, 0, 512 * 2752)
    srd(a, 24, 10, 0, 512 * 2752)
    srd(a, 28, 14, WS_WGU, 2816 * 1024)
    a("""
    s_lshl_b32 s19, s17, 6
    v_add_u32 v3, s19, v2
    v_lshlrev_b32 v4, 1, v3
    s_mul_i32 s32, s18, 22016
    """)
    for j in range(8):
        a(f"buffer_load_ushort v{16+j}, v4, s[20:23], s32 offen")
        a(f"buffer_load_ushort v{24+j}, v4, s[24:27], s32 offen")
        if j < 7:
            a("s_add_u32 s32, s32, 2752")
    a("""
    v_lshrrev_b32 v5, 5, v3
    v_lshlrev_b32 v5, 6, v5
    v_and_b32 v6, 31, v3
    v_add_u32 v5, v5, v6
    v_lshlrev_b32 v5, 10, v5
    s_lshl_b32 s33, s18, 4
    v_mov_b32 v7, 1376
    v_cmp_gt_u32 vcc, v7, v3
    s_waitcnt vmcnt(0)
    """)
    for j in range(8):
        a(f"v_lshl_or_b32 v{8+j}, v{17+2*j}, 16, v{16+2*j}")
    for j in range(8):
        a(f"v_cndmask_b32 v{8+j}, 0, v{8+j}, vcc")
    a("""
    buffer_store_dwordx4 v[8:11], v5, s[28:31], s33 offen
    s_add_u32 s33, s33, 32768
    buffer_store_dwordx4 v[12:15], v5, s[28:31], s33 offen
    s_endpgm
    """)
    a.label("L_prep_wd")
    a(f"""
    s_sub_u32 s16, s16, {N_LN + N_WGU}
    s_mul_hi_u32 s17, s16, {((1 << 32) + 175) // 176}
    s_mul_i32 s18, s17, 176
    s_sub_u32 s18, s16, s18
    """)
    srd(a, 20, 12, 0, 1376 * 1024)
    srd(a, 28, 14, WS_B + (4 << 20), 512 * 4096)
    a("""
    s_lshl_b32 s19, s17, 6
    v_add_u32 v3, s19, v2
    v_lshlrev_b32 v4, 1, v3
    s_lshl_b32 s32, s18, 13
    """)
    for j in range(8):
        a(f"buffer_load_ushort v{16+j}, v4, s[20:23], s32 offen")
        if j < 7:
            a("s_add_u32 s32, s32, 1024")
    a("""
    v_lshlrev_b32 v5, 12, v3
    s_lshl_b32 s33, s18, 4
    s_waitcnt vmcnt(0)
    """)
    for j in range(4):
        a(f"v_lshl_or_b32 v{8+j}, v{17+2*j}, 16, v{16+2*j}")
    a("""
    buffer_store_dwordx4 v[8:11], v5, s[28:31], s33 offen
    """)
    a("s_endpgm")
    a.label("L_prep_pf")
    a(f"""
    s_load_dwordx4 s[20:23], s[0:1], {KA_WSRE}
    s_lshl_b32 s17, s16, 13
    v_lshlrev_b32 v3, 4, v2
    s_waitcnt lgkmcnt(0)
    """)
    srd(a, 24, 20, 0, 2048 * 4096)
    srd(a, 28, 22, 0, 2048 * 4096)
    for i in range(8):
        a(f"buffer_load_dwordx4 v[{4+4*(i%4)}:{7+4*(i%4)}], v3, s[24:27], s17 offen")
        a(f"buffer_load_dwordx4 v[{20+4*(i%4)}:{23+4*(i%4)}], v3, s[28:31], s17 offen")
        a("s_add_u32 s17, s17, 1024")
    a.label("L_prep_end")
    a("s_endpgm")
    return kernel_desc(name, 40)


S_SRDP = 4
S_SRDQ = 8
S_OFFP = 12
S_OFFQ = 13
S_WOFF = 14
S_N = 15
S_NEND = 16
S_JL = 17
S_JEND = 18
S_WAVE = 19
S_WOFFQ = 39


def stamp(a, k):
    if OPT.get("stamp"):
        a(f"s_memrealtime s[{74+2*k}:{75+2*k}]")


def stamp_flush(a, pfx, T, n=8):
    if OPT.get("stamp"):
        a("s_waitcnt lgkmcnt(0)")
        srd(a, 68, 44, (62 << 20) + (0 if pfx == "L_g1" else (1 << 20)), 1 << 20)
        a(f"""
        s_lshl_b32 s72, s2, 3
        s_add_u32 s72, s72, s{S_WAVE}
        s_lshl_b32 s72, s72, 6
        v_mov_b32 v{T}, 0
        """)
        for i in range(2 * n):
            a(f"v_mov_b32 v{T+1}, s{74+i}")
            a(f"buffer_store_dword v{T+1}, v{T}, s[68:71], s72 offen offset:{4*i}")


class Core:
    def __init__(self, MT, NS):
        self.MT, self.NS = MT, NS
        self.BM = 64 * MT
        self.PSZ = self.BM * 128
        self.QSZ = 16384
        self.QBASE = NS * self.PSZ
        self.LDS = self.QBASE + NS * self.QSZ
        self.NPI = self.BM // 32
        self.NDMA = self.NPI + 4
        self.V_LDP = 4
        self.V_LDQ = 12
        self.M16 = bool(OPT.get("m16", 0))
        self.V_FA = 4
        if self.M16:
            self.PA = 4
            self.PB = self.PA + MT * 4
            self.QA = self.PB + MT * 4
            self.QB = self.QA + 16
            self.V_ACC = self.QB + 16
            nkk, fr = 2, 2048
            nP, nQ = 2 * MT, 4
        else:
            self.FS = (MT + 2) * 4
            self.V_FB = self.V_FA + self.FS
            self.V_ACC = self.V_FB + self.FS
            nkk, fr = 4, 4096
            nP, nQ = MT, 2
        self.V_RD = self.V_ACC + MT * 32
        self.rd = {}
        n = 0
        for op, base, ssz, nt in (("P", 0, self.PSZ, nP), ("Q", self.QBASE, self.QSZ, nQ)):
            wins = sorted({(base + st * ssz + t * fr) >> 16 for st in range(NS) for t in range(nt)})
            for w in wins:
                for kk in range(nkk):
                    self.rd[(op, kk, w)] = self.V_RD + n
                    n += 1
        self.V_TMP = (self.V_RD + n + 1) // 2 * 2
        self.LN_MASK = 15 if self.M16 else 31
        self.LM_SHIFT = 4 if self.M16 else 5

    def acc(self, mt, nt):
        return self.V_ACC + (mt * 2 + nt) * 16

    def accs(self, mt, nt):
        b = self.acc(mt, nt)
        return f"v[{b}:{b+15}]"

    def acc16(self, mi, ni):
        return self.V_ACC + ((mi >> 1) * 2 + (ni >> 1)) * 16 + ((mi & 1) * 2 + (ni & 1)) * 4

    def quads(self):
        out = []
        if self.M16:
            for mi in range(2 * self.MT):
                for ni in range(4):
                    out.append((self.acc16(mi, ni), mi * 16, ni * 16))
        else:
            for mt in range(self.MT):
                for nt in range(2):
                    for q in range(4):
                        out.append((self.acc(mt, nt) + 4 * q, mt * 32 + 8 * q, nt * 32))
        return out

    def setup_loader(self, a, rowP_s, rowQ_s, strideP, strideQ):
        t = 20
        rq = self.BM // 4
        a(f"""
        s_sub_u32 s{S_WOFF}, s{S_WAVE}, 4
        s_lshl_b32 s{S_WOFFQ}, s{S_WOFF}, 12
        s_mul_i32 s30, s{S_WOFF}, {rq}
        s_lshl_b32 s31, s{S_WOFF}, 5
        s_mul_i32 s{S_WOFF}, s{S_WOFF}, {rq*128}
        v_lshrrev_b32 v{t}, 3, v1
        v_and_b32 v{t+2}, 7, v1
        v_lshrrev_b32 v{t+3}, 4, v1
        v_xor_b32 v{t+2}, v{t+2}, v{t+3}
        """)
        for (vld, row_s, stride, n, sw) in ((self.V_LDP, rowP_s, strideP, self.NPI, 30), (self.V_LDQ, rowQ_s, strideQ, 4, 31)):
            sh = stride.bit_length() - 1
            assert 1 << sh == stride
            for i in range(n):
                a(f"v_add_u32 v{t+4}, s{row_s}, v{t}")
                a(f"v_add_u32 v{t+4}, s{sw}, v{t+4}")
                if i:
                    a(f"v_add_u32 v{t+4}, {8*i}, v{t+4}")
                a(f"v_lshlrev_b32 v{t+4}, {sh}, v{t+4}")
                if i & 1:
                    a(f"v_xor_b32 v{t+5}, 4, v{t+2}")
                else:
                    a(f"v_mov_b32 v{t+5}, v{t+2}")
                a(f"v_lshlrev_b32 v{t+5}, 4, v{t+5}")
                a(f"v_add_u32 v{vld+i}, v{t+4}, v{t+5}")
                if i & 3:
                    a(f"v_subrev_u32 v{vld+i}, {1024*(i&3)}, v{vld+i}")

    def setup_compute(self, a):
        t = self.V_TMP
        if self.M16:
            a(f"""
            v_and_b32 v{t}, 15, v1
            v_lshrrev_b32 v{t+1}, 4, v1
            v_lshrrev_b32 v{t+2}, 1, v{t}
            v_xor_b32 v{t+2}, v{t+2}, v{t+1}
            """)
        else:
            a(f"""
            v_and_b32 v{t}, 31, v1
            v_lshrrev_b32 v{t+1}, 5, v1
            v_lshrrev_b32 v{t+2}, 1, v1
            v_and_b32 v{t+2}, 7, v{t+2}
            v_xor_b32 v{t+2}, v{t+2}, v{t+1}
            """)
        a(f"""
        v_lshrrev_b32 v{t+3}, 1, v2
        v_mul_u32_u24 v{t+3}, {self.MT*32}, v{t+3}
        v_add_u32 v{t+3}, v{t+3}, v{t}
        v_lshlrev_b32 v{t+3}, 7, v{t+3}
        v_and_b32 v{t+4}, 1, v2
        v_lshlrev_b32 v{t+4}, 6, v{t+4}
        v_add_u32 v{t+4}, v{t+4}, v{t}
        v_lshlrev_b32 v{t+4}, 7, v{t+4}
        """)
        for (op, kk, w), r in self.rd.items():
            a(f"v_xor_b32 v{t+5}, {(4 if self.M16 else 2)*kk}, v{t+2}")
            a(f"v_lshlrev_b32 v{t+5}, 4, v{t+5}")
            a(f"v_add_u32 v{r}, v{t+3 if op == 'P' else t+4}, v{t+5}")
            if w:
                a(f"v_add_u32 v{r}, {w << 16}, v{r}")
        for i in range(self.MT * 32):
            a(f"v_mov_b32 v{self.V_ACC+i}, 0")

    def rdP16(self, a, dst, stage, kk, mh):
        for j in range(self.MT):
            off = stage * self.PSZ + (mh * self.MT + j) * 2048
            a(f"ds_read_b128 v[{dst+4*j}:{dst+4*j+3}], v{self.rd[('P', kk, off >> 16)]} offset:{off & 0xffff}")

    def rdQ16(self, a, dst, stage, kk):
        for j in range(4):
            off = self.QBASE + stage * self.QSZ + j * 2048
            a(f"ds_read_b128 v[{dst+4*j}:{dst+4*j+3}], v{self.rd[('Q', kk, off >> 16)]} offset:{off & 0xffff}")

    def mfma16(self, a, P, Q, mh):
        for j in range(self.MT):
            for ni in range(4):
                r = self.acc16(mh * self.MT + j, ni)
                a(f"v_mfma_f32_16x16x32_bf16 v[{r}:{r+3}], v[{P+4*j}:{P+4*j+3}], v[{Q+4*ni}:{Q+4*ni+3}], v[{r}:{r+3}]")

    def dma(self, a, stage):
        for i in range(self.NPI):
            if i % 4 == 0:
                a(f"s_add_u32 m0, s{S_WOFF}, {stage*self.PSZ + i*1024}")
                a("s_nop 0")
            a(f"buffer_load_dwordx4 v{self.V_LDP+i}, s[{S_SRDP}:{S_SRDP+3}], s{S_OFFP} offen offset:{1024*(i&3)} lds")
        a(f"s_add_u32 m0, s{S_WOFFQ}, {self.QBASE + stage*self.QSZ}")
        a("s_nop 0")
        for i in range(4):
            a(f"buffer_load_dwordx4 v{self.V_LDQ+i}, s[{S_SRDQ}:{S_SRDQ+3}], s{S_OFFQ} offen offset:{1024*i} lds")

    def reads(self, a, fset, stage, kk):
        for mt in range(self.MT):
            off = stage * self.PSZ + mt * 4096
            a(f"ds_read_b128 v[{fset+4*mt}:{fset+4*mt+3}], v{self.rd[('P', kk, off >> 16)]} offset:{off & 0xffff}")
        for nt in range(2):
            off = self.QBASE + stage * self.QSZ + nt * 4096
            qb = fset + 4 * self.MT + 4 * nt
            a(f"ds_read_b128 v[{qb}:{qb+3}], v{self.rd[('Q', kk, off >> 16)]} offset:{off & 0xffff}")

    def mfma(self, a, fset):
        for mt in range(self.MT):
            for nt in range(2):
                qb = fset + 4 * self.MT + 4 * nt
                if not OPT.get("nomfma"):
                    a(f"v_mfma_f32_32x32x16_bf16 {self.accs(mt,nt)}, v[{fset+4*mt}:{fset+4*mt+3}], v[{qb}:{qb+3}], {self.accs(mt,nt)}")

    def body(self, a, pfx, step_setup, rowP_s, rowQ_s, strideP, strideQ, tail=None, pre=None, filler=None):
        NS = self.NS
        nr = self.MT + 2
        a(f"""
        v_and_b32 v1, 63, v0
        v_lshrrev_b32 v2, 6, v0
        s_nop 0
        v_readfirstlane_b32 s{S_WAVE}, v2
        s_nop 3
        s_mov_b32 s{S_N}, 0
        s_cmp_lt_u32 s{S_WAVE}, 4
        s_cbranch_scc1 {pfx}_compute
        """)

        self.setup_loader(a, rowP_s, rowQ_s, strideP, strideQ)
        for st in range(NS - 1):
            step_setup(a)
            self.dma(a, st)
        a(f"""
        s_waitcnt vmcnt({(NS-2)*self.NDMA})
        s_barrier
        """)
        a.label(f"{pfx}_lloop")
        for u in range(NS):
            a(f"s_cmp_ge_u32 s{S_JL}, s{S_JEND}")
            a(f"s_cbranch_scc1 {pfx}_lskip{u}")
            step_setup(a)
            self.dma(a, (u + NS - 1) % NS)
            a(f"s_waitcnt vmcnt({(NS-2)*self.NDMA})")
            a(f"s_branch {pfx}_lbar{u}")
            a.label(f"{pfx}_lskip{u}")
            a("s_waitcnt vmcnt(0)")
            a.label(f"{pfx}_lbar{u}")
            a("s_barrier")
            a(f"s_add_u32 s{S_N}, s{S_N}, 1")
            a(f"s_cmp_ge_u32 s{S_N}, s{S_NEND}")
            if u < NS - 1:
                a(f"s_cbranch_scc1 {pfx}_ldone")
            else:
                a(f"s_cbranch_scc0 {pfx}_lloop")
        a.label(f"{pfx}_ldone")
        a("s_endpgm")
        a.label(f"{pfx}_compute")
        self.setup_compute(a)
        if pre:
            pre(a)
        a("s_barrier")
        if OPT.get("stamp"):
            a("s_memtime s[60:61]")
            a("s_memrealtime s[62:63]")
            a("s_memrealtime s[76:77]")
            a("s_waitcnt lgkmcnt(0)")
        MT = self.MT
        if self.M16:
            self.rdP16(a, self.PA, 0, 0, 0)
            self.rdQ16(a, self.QA, 0, 0)
        else:
            self.reads(a, self.V_FA, 0, 0)
        a.label(f"{pfx}_loop")
        for u in range(NS):
            if self.M16:
                self.rdP16(a, self.PB, u, 0, 1)
                a(f"s_waitcnt lgkmcnt({MT})")
                self.mfma16(a, self.PA, self.QA, 0)
                if filler:
                    filler(a)
                self.rdP16(a, self.PA, u, 1, 0)
                self.rdQ16(a, self.QB, u, 1)
                a(f"s_waitcnt lgkmcnt({MT+4})")
                self.mfma16(a, self.PB, self.QA, 1)
                self.rdP16(a, self.PB, u, 1, 1)
                a(f"s_waitcnt lgkmcnt({MT})")
                self.mfma16(a, self.PA, self.QB, 0)
                if filler:
                    filler(a)
                a("s_waitcnt lgkmcnt(0)")
                a("s_barrier")
                self.rdP16(a, self.PA, (u + 1) % NS, 0, 0)
                self.rdQ16(a, self.QA, (u + 1) % NS, 0)
                self.mfma16(a, self.PB, self.QB, 1)
            else:
                self.reads(a, self.V_FB, u, 1)
                a(f"s_waitcnt lgkmcnt({nr})")
                self.mfma(a, self.V_FA)
                if filler:
                    filler(a)
                self.reads(a, self.V_FA, u, 2)
                a(f"s_waitcnt lgkmcnt({nr})")
                self.mfma(a, self.V_FB)
                self.reads(a, self.V_FB, u, 3)
                a(f"s_waitcnt lgkmcnt({nr})")
                self.mfma(a, self.V_FA)
                if filler:
                    filler(a)
                a("s_waitcnt lgkmcnt(0)")
                a("s_barrier")
                self.reads(a, self.V_FA, (u + 1) % NS, 0)
                self.mfma(a, self.V_FB)
            a(f"s_add_u32 s{S_N}, s{S_N}, 1")
            a(f"s_cmp_ge_u32 s{S_N}, s{S_NEND}")
            if u < NS - 1:
                a(f"s_cbranch_scc1 {pfx}_done")
            else:
                a(f"s_cbranch_scc0 {pfx}_loop")
        a.label(f"{pfx}_done")
        a("s_waitcnt lgkmcnt(0)")
        a("s_nop 15")
        if OPT.get("stamp"):
            T = self.V_TMP
            a("s_memtime s[64:65]")
            a("s_memrealtime s[66:67]")
            a("s_memrealtime s[78:79]")
            a("s_waitcnt lgkmcnt(0)")
            srd(a, 68, 44, (60 << 20) + (0 if pfx == "L_g1" else (1 << 20)), 1 << 20)
            a(f"""
            s_lshl_b32 s72, s2, 3
            s_add_u32 s72, s72, s{S_WAVE}
            s_lshl_b32 s72, s72, 5
            v_mov_b32 v{T}, 0
            """)
            for i in range(8):
                a(f"v_mov_b32 v{T+1}, s{60+i}")
                a(f"buffer_store_dword v{T+1}, v{T}, s[68:71], s72 offen offset:{4*i}")


G1 = None
G1_WGS = 240


def gen_gemm1(a):
    global G1
    C = G1 = Core(4, 3)
    name = "gemm1_kernel"
    kernel_begin(a, name)
    a(f"""
    s_cmp_ge_u32 s2, {G1_WGS}
    s_cbranch_scc1 L_g1_end
    {"s_memrealtime s[74:75]" if OPT.get("stamp") else ""}
    s_cmp_ge_u32 s2, 240
    s_cbranch_scc1 L_g1_pf
    s_load_dwordx4 s[40:43], s[0:1], {KA_WDRE}
    s_load_dwordx2 s[44:45], s[0:1], {KA_WS}
    s_waitcnt lgkmcnt(0)
    s_cmp_ge_u32 s2, 64
    s_cbranch_scc1 L_g1_ffn
    """)
    srd(a, S_SRDP, 44, WS_XN, 2048 * 1024)
    a("""
    s_lshr_b32 s21, s2, 3
    s_and_b32 s24, s2, 7
    s_lshl_b32 s24, s24, 8
    s_cmp_ge_u32 s21, 4
    s_cselect_b64 s[46:47], s[42:43], s[40:41]
    s_and_b32 s25, s21, 3
    s_lshl_b32 s25, s25, 7
    """)
    srd(a, S_SRDQ, 46, 0, 512 * 1024)
    a("s_branch L_g1_main")
    a.label("L_g1_ffn")
    srd(a, S_SRDP, 44, WS_WGU, 2816 * 1024)
    srd(a, S_SRDQ, 44, WS_XN, 2048 * 1024)
    a("""
    s_sub_u32 s23, s2, 64
    s_and_b32 s25, s23, 15
    s_lshl_b32 s25, s25, 7
    s_lshr_b32 s24, s23, 4
    s_lshl_b32 s24, s24, 8
    s_mov_b32 s21, 8
    """)
    a.label("L_g1_main")
    a(f"""
    s_mov_b32 s26, s{S_SRDP+2}
    s_mov_b32 s27, s{S_SRDQ+2}
    s_mov_b32 s{S_JL}, 0
    s_mov_b32 s{S_JEND}, 8
    s_mov_b32 s{S_NEND}, 8
    """)

    def step_setup(a):
        a(f"""
        s_lshl_b32 s{S_OFFP}, s{S_JL}, 7
        s_mov_b32 s{S_OFFQ}, s{S_OFFP}
        s_cmp_lt_u32 s{S_JL}, s{S_JEND}
        s_cselect_b32 s{S_SRDP+2}, s26, 0
        s_cselect_b32 s{S_SRDQ+2}, s27, 0
        s_add_u32 s{S_JL}, s{S_JL}, 1
        """)

    PFV = C.V_TMP + 12

    def pre(a):
        a(f"""
        s_load_dwordx4 s[48:51], s[0:1], {KA_WSRE}
        s_lshl_b32 s38, s2, 2
        s_add_u32 s38, s38, s{S_WAVE}
        s_lshl_b32 s38, s38, 10
        v_lshlrev_b32 v{PFV+8}, 4, v1
        s_waitcnt lgkmcnt(0)
        """)
        srd(a, 52, 48, 0, 2048 * 4096)
        srd(a, 56, 50, 0, 2048 * 4096)

    def filler(a):
        a(f"buffer_load_dwordx4 v[{PFV}:{PFV+3}], v{PFV+8}, s[52:55], s38 offen")
        a(f"buffer_load_dwordx4 v[{PFV+4}:{PFV+7}], v{PFV+8}, s[56:59], s38 offen")
        a(f"s_add_u32 s38, s38, {960*1024}")

    if OPT.get("pf", 0) == 2:
        C.body(a, "L_g1", step_setup, 24, 25, 1024, 1024, None, pre, filler)
    else:
        C.body(a, "L_g1", step_setup, 24, 25, 1024, 1024)
    t = C.V_TMP
    a(f"""
    v_and_b32 v{t}, {C.LN_MASK}, v1
    v_lshrrev_b32 v{t+1}, {C.LM_SHIFT}, v1
    s_lshr_b32 s28, s{S_WAVE}, 1
    s_and_b32 s29, s{S_WAVE}, 1
    s_cmp_ge_u32 s21, 8
    s_cbranch_scc1 L_g1_epi_ffn
    """)
    RS = 272
    a(f"""
    s_lshr_b32 s30, s21, 2
    s_lshl_b32 s30, s30, 21
    s_add_u32 s30, s30, {WS_B}
    s_add_u32 s32, s44, s30
    s_addc_u32 s33, s45, 0
    s_mov_b32 s34, {512*4096}
    s_mov_b32 s35, 0x00020000
    s_mul_i32 s36, s{S_WAVE}, {64*RS}
    v_mul_u32_u24 v{t+2}, {RS}, v{t}
    v_lshlrev_b32 v{t+3}, 3, v{t+1}
    v_add3_u32 v{t+2}, v{t+2}, v{t+3}, s36
    s_cmp_ge_u32 s21, 4
    s_cselect_b32 s31, 0x80008000, 0
    s_barrier
    """)
    k = 0
    for (b, moff, noff) in C.quads():
        r = t + 4 + 2 * (k % 4)
        k += 1
        a(f"v_cvt_pk_bf16_f32 v{r}, v{b}, v{b+1}")
        a(f"v_cvt_pk_bf16_f32 v{r+1}, v{b+2}, v{b+3}")
        a(f"v_xor_b32 v{r}, s31, v{r}")
        a(f"v_xor_b32 v{r+1}, s31, v{r+1}")
        a(f"ds_write_b64 v{t+2}, v[{r}:{r+1}] offset:{noff*RS + moff*2}")
    a(f"""
    v_lshrrev_b32 v{t+3}, 4, v1
    v_and_b32 v{t+4}, 15, v1
    v_lshlrev_b32 v{t+4}, 4, v{t+4}
    v_mul_u32_u24 v{t+5}, {RS}, v{t+3}
    v_add3_u32 v{t+5}, v{t+5}, v{t+4}, s36
    v_lshlrev_b32 v{t+3}, 12, v{t+3}
    v_add_u32 v{t+3}, v{t+3}, v{t+4}
    s_lshl_b32 s30, s29, 6
    s_add_u32 s30, s30, s25
    s_lshl_b32 s30, s30, 12
    s_lshl_b32 s37, s28, 7
    s_add_u32 s37, s37, s24
    s_lshl_b32 s37, s37, 1
    s_add_u32 s30, s30, s37
    s_waitcnt lgkmcnt(0)
    """)
    for i in range(16):
        a(f"ds_read_b128 v[{C.V_ACC+4*i}:{C.V_ACC+4*i+3}], v{t+5} offset:{i*4*RS}")
    for i in range(16):
        a(f"s_waitcnt lgkmcnt({15-i})")
        a(f"buffer_store_dwordx4 v[{C.V_ACC+4*i}:{C.V_ACC+4*i+3}], v{t+3}, s[32:35], s30 offen")
        a("s_add_u32 s30, s30, 0x4000")
    if OPT.get("stamp"):
        stamp(a, 3)
        a("s_waitcnt vmcnt(0)")
        stamp(a, 4)
        stamp_flush(a, "L_g1", t + 4)
    a("s_endpgm")
    a.label("L_g1_epi_ffn")
    srd(a, 32, 44, WS_H, 2048 * 4096)
    c0 = -2.0 * 0.7978845608028654 * 1.4426950408889634
    c1 = c0 * 0.044715
    RS2 = 144
    a(f"""
    s_mul_i32 s36, s{S_WAVE}, {64*RS2}
    v_mul_u32_u24 v{t+2}, {RS2}, v{t}
    v_lshlrev_b32 v{t+3}, 3, v{t+1}
    v_add3_u32 v{t+2}, v{t+2}, v{t+3}, s36
    v_mov_b32 v{t+4}, 0x{f32bits(c0):08x}
    v_mov_b32 v{t+5}, 0x{f32bits(c0):08x}
    v_mov_b32 v{t+10}, 0x{f32bits(c1):08x}
    v_mov_b32 v{t+11}, 0x{f32bits(c1):08x}
    s_barrier
    """)
    k = 0
    qd = {(m, n): r for (r, m, n) in C.quads()}
    for (G0, moff, noff) in C.quads():
        if moff % 64 >= 32:
            continue
        U0 = qd[(moff + 32, noff)]
        foff = (moff // 64) * 32 + moff % 64
        for _once in range(1):
            for _once2 in range(1):
                g = 4 + 8 * (k % 2)
                o = t + 6 + 2 * (k % 2)
                k += 1
                for p in range(2):
                    a(f"v_pk_mul_f32 v[{g+2*p}:{g+2*p+1}], v[{G0+2*p}:{G0+2*p+1}], v[{G0+2*p}:{G0+2*p+1}]")
                for p in range(2):
                    a(f"v_pk_fma_f32 v[{g+2*p}:{g+2*p+1}], v[{g+2*p}:{g+2*p+1}], v[{t+10}:{t+11}], v[{t+4}:{t+5}]")
                for p in range(2):
                    a(f"v_pk_mul_f32 v[{g+2*p}:{g+2*p+1}], v[{g+2*p}:{g+2*p+1}], v[{G0+2*p}:{G0+2*p+1}]")
                for r in range(4):
                    a(f"v_exp_f32 v{g+r}, v{g+r}")
                for p in range(2):
                    a(f"v_pk_mul_f32 v[{g+4+2*p}:{g+4+2*p+1}], v[{G0+2*p}:{G0+2*p+1}], v[{U0+2*p}:{U0+2*p+1}]")
                for p in range(2):
                    a(f"v_pk_add_f32 v[{g+2*p}:{g+2*p+1}], v[{g+2*p}:{g+2*p+1}], 1.0 op_sel_hi:[1,0]")
                for r in range(4):
                    a(f"v_rcp_f32 v{g+r}, v{g+r}")
                a("s_nop 0")
                for p in range(2):
                    a(f"v_pk_mul_f32 v[{g+2*p}:{g+2*p+1}], v[{g+2*p}:{g+2*p+1}], v[{g+4+2*p}:{g+4+2*p+1}]")
                a(f"v_cvt_pk_bf16_f32 v{o}, v{g}, v{g+1}")
                a(f"v_cvt_pk_bf16_f32 v{o+1}, v{g+2}, v{g+3}")
                a(f"ds_write_b64 v{t+2}, v[{o}:{o+1}] offset:{noff*RS2 + foff*2}")
    a(f"""
    v_lshrrev_b32 v{t+3}, 3, v1
    v_and_b32 v{t+4}, 7, v1
    v_lshlrev_b32 v{t+4}, 4, v{t+4}
    v_mul_u32_u24 v{t+5}, {RS2}, v{t+3}
    v_add3_u32 v{t+5}, v{t+5}, v{t+4}, s36
    v_lshlrev_b32 v{t+3}, 12, v{t+3}
    v_add_u32 v{t+3}, v{t+3}, v{t+4}
    s_lshl_b32 s30, s29, 6
    s_add_u32 s30, s30, s25
    s_lshl_b32 s30, s30, 12
    s_lshl_b32 s37, s28, 7
    s_add_u32 s37, s37, s24
    s_add_u32 s30, s30, s37
    s_waitcnt lgkmcnt(0)
    """)
    for i in range(8):
        a(f"ds_read_b128 v[{C.V_ACC+4*i}:{C.V_ACC+4*i+3}], v{t+5} offset:{i*8*RS2}")
    for i in range(8):
        a(f"s_waitcnt lgkmcnt({7-i})")
        a(f"buffer_store_dwordx4 v[{C.V_ACC+4*i}:{C.V_ACC+4*i+3}], v{t+3}, s[32:35], s30 offen")
        a("s_add_u32 s30, s30, 0x8000")
    if OPT.get("stamp"):
        stamp(a, 3)
        a("s_waitcnt vmcnt(0)")
        stamp(a, 4)
        stamp_flush(a, "L_g1", t + 6)
    a("s_endpgm")
    a.label("L_g1_pf")
    a(f"""
    s_load_dwordx4 s[48:51], s[0:1], {KA_WSRE}
    v_and_b32 v1, 63, v0
    v_lshrrev_b32 v2, 6, v0
    s_nop 0
    v_readfirstlane_b32 s3, v2
    s_sub_u32 s38, s2, 240
    s_lshl_b32 s38, s38, 3
    s_nop 2
    s_add_u32 s38, s38, s3
    s_lshl_b32 s38, s38, 16
    v_lshlrev_b32 v3, 4, v1
    s_mov_b32 s39, 0
    s_waitcnt lgkmcnt(0)
    """)
    srd(a, 52, 48, 0, 2048 * 4096)
    srd(a, 56, 50, 0, 2048 * 4096)
    a.label("L_g1_pfl")
    for i in range(4):
        a(f"buffer_load_dwordx4 v[{4+8*i}:{7+8*i}], v3, s[52:55], s38 offen offset:{1024*i}")
        a(f"buffer_load_dwordx4 v[{8+8*i}:{11+8*i}], v3, s[56:59], s38 offen offset:{1024*i}")
    a("""
    s_add_u32 s38, s38, 4096
    s_add_u32 s39, s39, 1
    s_cmp_lt_u32 s39, 16
    s_cbranch_scc1 L_g1_pfl
    """)
    a.label("L_g1_end")
    a("s_endpgm")
    return kernel_desc(name, C.V_TMP + 24)


G2 = None
G2_WGS = 256


def gen_gemm2(a):
    global G2
    C = G2 = Core(2, 4)
    name = "gemm2_kernel"
    kernel_begin(a, name)
    a(f"""
    s_cmp_ge_u32 s2, {G2_WGS}
    s_cbranch_scc1 L_g2_end
    {"s_memrealtime s[74:75]" if OPT.get("stamp") else ""}
    s_load_dwordx4 s[40:43], s[0:1], {KA_WSRE}
    s_load_dwordx2 s[44:45], s[0:1], {KA_WS}
    s_load_dwordx2 s[48:49], s[0:1], {KA_X}
    s_load_dwordx4 s[52:55], s[0:1], {KA_OUT}
    s_and_b32 s23, s2, 3
    s_lshr_b32 s20, s2, 2
    s_and_b32 s20, s20, 1
    s_lshl_b32 s20, s20, 3
    s_lshr_b32 s21, s2, 3
    s_and_b32 s22, s21, 7
    s_add_u32 s20, s20, s22
    s_lshr_b32 s22, s21, 3
    s_mul_i32 s{S_JL}, s23, 86
    s_add_u32 s{S_JEND}, s{S_JL}, 86
    s_lshr_b32 s{S_JL}, s{S_JL}, 2
    s_lshr_b32 s{S_JEND}, s{S_JEND}, 2
    s_sub_u32 s{S_NEND}, s{S_JEND}, s{S_JL}
    s_lshl_b32 s24, s22, 7
    s_lshl_b32 s25, s20, 7
    s_waitcnt lgkmcnt(0)
    """)
    srd(a, S_SRDP, 44, WS_B, 3 * 512 * 4096)
    a(f"""
    s_add_u32 s46, s44, {WS_H}
    s_addc_u32 s47, s45, 0
    s_mov_b32 s{S_SRDQ+3}, 0x00020000
    """)

    def step_setup(a):
        a(f"""
        s_lshr_b32 s26, s{S_JL}, 5
        s_and_b32 s{S_OFFQ}, s{S_JL}, 31
        s_lshl_b32 s{S_OFFQ}, s{S_OFFQ}, 7
        s_lshl_b32 s27, s26, 21
        s_add_u32 s{S_OFFP}, s{S_OFFQ}, s27
        s_cmp_eq_u32 s26, 0
        s_cselect_b64 s[{S_SRDQ}:{S_SRDQ+1}], s[40:41], s[42:43]
        s_cmp_ge_u32 s26, 2
        s_cselect_b64 s[{S_SRDQ}:{S_SRDQ+1}], s[46:47], s[{S_SRDQ}:{S_SRDQ+1}]
        s_cmp_lt_u32 s{S_JL}, s{S_JEND}
        s_cselect_b32 s{S_SRDP+2}, {3*512*4096}, 0
        s_cselect_b32 s{S_SRDQ+2}, {2048*4096}, 0
        s_add_u32 s{S_JL}, s{S_JL}, 1
        """)

    C.body(a, "L_g2", step_setup, 24, 25, 4096, 4096)
    t = C.V_TMP
    srd(a, 32, 44, WS_PART, 64 * 16 * 8192)
    a(f"""
    s_lshl_b32 s28, s20, 2
    s_add_u32 s28, s28, s22
    s_lshl_b32 s31, s{S_WAVE}, 11
    v_lshlrev_b32 v{t}, 4, v1
    """)
    for tl in range(4):
        a(f"""
        s_cmp_eq_u32 s23, {tl}
        s_cbranch_scc1 L_g2_pub{tl}
        s_lshl_b32 s30, s28, 2
        s_add_u32 s30, s30, {tl}
        s_lshl_b32 s30, s30, 2
        s_add_u32 s30, s30, s23
        s_lshl_b32 s30, s30, 13
        s_add_u32 s30, s30, s31
        """)
        b = C.V_ACC + tl * 16
        r = t + 4 + 8 * (tl & 1)
        for i in range(8):
            a(f"v_cvt_pk_bf16_f32 v{r+i}, v{b+2*i}, v{b+2*i+1}")
        a(f"buffer_store_dwordx4 v[{r}:{r+3}], v{t}, s[32:35], s30 offen sc1")
        a(f"buffer_store_dwordx4 v[{r+4}:{r+7}], v{t}, s[32:35], s30 offen offset:1024 sc1")
        a.label(f"L_g2_pub{tl}")
    srd(a, 56, 54, 0, 256)
    a("s_waitcnt vmcnt(0)")
    stamp(a, 3)
    a(f"""
    s_barrier
    s_cmp_lg_u32 s{S_WAVE}, 0
    s_cbranch_scc1 L_g2_wait
    s_lshl_b32 s29, s28, 2
    v_mov_b32 v{t+1}, 1
    v_mov_b32 v{t+2}, 0
    s_mov_b64 s[60:61], exec
    s_mov_b64 exec, 1
    buffer_atomic_add v{t+1}, v{t+2}, s[56:59], s29 offen
    """)
    a.label("L_g2_spin")
    a(f"""
    buffer_load_dword v{t+1}, v{t+2}, s[56:59], s29 offen sc1
    s_waitcnt vmcnt(0)
    v_readfirstlane_b32 s30, v{t+1}
    s_nop 3
    s_cmp_ge_u32 s30, 4
    s_cbranch_scc1 L_g2_spun
    s_sleep 1
    s_branch L_g2_spin
    """)
    a.label("L_g2_spun")
    a("s_mov_b64 exec, s[60:61]")
    a.label("L_g2_wait")
    a("s_barrier")
    stamp(a, 4)
    srd(a, 60, 48, 0, 2048 * 1024)
    srd(a, 64, 52, 0, 2048 * 1024)
    L = t + 4
    X = L + 24
    QOFF = [(n % 32) * 1024 + (m % 32) * 2 for (r, m, n) in sorted(C.quads()) if r < C.V_ACC + 16]
    assert len(QOFF) == 4 and max(QOFF) < 32768
    a(f"""
    s_and_b32 s36, s{S_WAVE}, 1
    s_lshl_b32 s36, s36, 1
    s_and_b32 s37, s23, 1
    s_add_u32 s36, s36, s37
    s_lshl_b32 s36, s36, 5
    s_add_u32 s36, s36, s25
    s_lshr_b32 s37, s{S_WAVE}, 1
    s_lshl_b32 s37, s37, 1
    s_lshr_b32 s38, s23, 1
    s_add_u32 s37, s37, s38
    s_lshl_b32 s37, s37, 5
    s_add_u32 s37, s37, s24
    v_and_b32 v{t+1}, {C.LN_MASK}, v1
    v_add_u32 v{t+1}, s36, v{t+1}
    v_lshlrev_b32 v{t+1}, 10, v{t+1}
    v_lshrrev_b32 v{t+2}, {C.LM_SHIFT}, v1
    v_lshlrev_b32 v{t+2}, 2, v{t+2}
    v_add_u32 v{t+2}, s37, v{t+2}
    v_lshlrev_b32 v{t+2}, 1, v{t+2}
    v_add_u32 v{t+1}, v{t+1}, v{t+2}
    s_lshl_b32 s38, s28, 2
    s_add_u32 s38, s38, s23
    s_lshl_b32 s38, s38, 2
    """)
    for i in range(1, 4):
        a(f"""
        s_add_u32 s30, s23, {i}
        s_and_b32 s30, s30, 3
        s_add_u32 s30, s30, s38
        s_lshl_b32 s30, s30, 13
        s_add_u32 s30, s30, s31
        """)
        r = L + (i - 1) * 8
        a(f"buffer_load_dwordx4 v[{r}:{r+3}], v{t}, s[32:35], s30 offen sc1")
        a(f"buffer_load_dwordx4 v[{r+4}:{r+7}], v{t}, s[32:35], s30 offen offset:1024 sc1")
    a("s_mov_b32 s36, 0")
    a("s_mov_b32 s37, 0x4000")
    for q in range(4):
        a(f"buffer_load_dwordx2 v[{X+2*q}:{X+2*q+1}], v{t+1}, s[60:63], s{36 + QOFF[q] // 16384} offen offset:{QOFF[q] % 16384}")
    for tl in range(3):
        a(f"s_cmp_eq_u32 s23, {tl}")
        a(f"s_cbranch_scc1 L_g2_fin{tl}")
    for tl in (3, 0, 1, 2):
        if tl != 3:
            a.label(f"L_g2_fin{tl}")
        a("s_waitcnt vmcnt(0)")
        b = C.V_ACC + tl * 16
        for src in list(range(3)) + ["x"]:
            for i in range(8):
                rr = (L + src * 8 + i) if src != "x" else X + i
                a(f"v_lshlrev_b32 v{t+2}, 16, v{rr}")
                a(f"v_and_b32 v{t+3}, 0xffff0000, v{rr}")
                a(f"v_add_f32 v{b+2*i}, v{b+2*i}, v{t+2}")
                a(f"v_add_f32 v{b+2*i+1}, v{b+2*i+1}, v{t+3}")
        for q in range(4):
            a(f"v_cvt_pk_bf16_f32 v{X+2*q}, v{b+4*q}, v{b+4*q+1}")
            a(f"v_cvt_pk_bf16_f32 v{X+2*q+1}, v{b+4*q+2}, v{b+4*q+3}")
            a(f"buffer_store_dwordx2 v[{X+2*q}:{X+2*q+1}], v{t+1}, s[64:67], s{36 + QOFF[q] // 16384} offen offset:{QOFF[q] % 16384}")
        if OPT.get("stamp"):
            a("s_waitcnt vmcnt(0)")
            stamp(a, 5)
            stamp_flush(a, "L_g2", t + 2)
        a("s_endpgm")
    a.label("L_g2_end")
    a("s_endpgm")
    return kernel_desc(name, X + 8)


def main():
    global ARGS
    ARGS = [x for x in sys.argv[1:] if "=" not in x]
    for x in sys.argv[1:]:
        if "=" in x:
            k, v = x.split("=")
            OPT[k] = int(v)
    hdr = open("cdna_kernels/" + NAME + ".s.ref").read().split("\n")
    top = [l for l in hdr if l.startswith(";") and "@launch" not in l and "Override" not in l and "grid=ceil" not in l]
    a = Asm()
    descs = []
    a.raw('.amdgcn_target "amdgcn-amd-amdhsa--gfx950"')
    a.raw(".text")
    descs.append(gen_prep(a))
    descs.append(gen_gemm1(a))
    descs.append(gen_gemm2(a))
    out = "\n".join(top) + "\n"
    out += f"; @launch kernel=prep_kernel grid=({PREP_WGS},1,1) block=(256,1,1) lds=0\n"
    out += f"; @launch kernel=gemm1_kernel grid=({G1_WGS},1,1) block=(512,1,1) lds={G1.LDS}\n"
    out += f"; @launch kernel=gemm2_kernel grid=({G2_WGS},1,1) block=(512,1,1) lds={G2.LDS}\n"
    if OPT.get("report"):
        out += f"; @launch kernel=report_kernel grid=(1,1,1) block=(64,1,1) lds=0\n"
        kernel_begin(a, "report_kernel")
        a(f"""
        s_cmp_ge_u32 s2, 1
        s_cbranch_scc1 L_rep_end
        s_load_dwordx4 s[4:7], s[0:1], {KA_DBG}
        s_waitcnt lgkmcnt(0)
        """)
        srd(a, 8, 4, 0, 256)
        srd(a, 12, 6, 59 << 20, 8 << 20)
        a("""
        v_lshlrev_b32 v1, 9, v0
        v_mov_b32 v2, 0
        buffer_load_dword v10, v2, s[12:15], 0 offen
        """)
        a(f"s_mov_b32 s16, {3 << 20}")
        a(f"s_mov_b32 s17, {4 << 20}")
        for k in range(5):
            a(f"buffer_load_dword v{11+k}, v1, s[12:15], s16 offen offset:{8*k}")
        for k in range(6):
            a(f"buffer_load_dword v{16+k}, v1, s[12:15], s17 offen offset:{8*k}")
        a("s_waitcnt vmcnt(0)")
        for k in range(11):
            a(f"v_sub_u32 v{11+k}, v{11+k}, v10")
        a("s_mov_b64 exec, 1")
        for k in range(11):
            a(f"buffer_store_dword v{11+k}, v2, s[8:11], 0 offen offset:{4*k}")
        a.label("L_rep_end")
        a("s_endpgm")
        descs.append(kernel_desc("report_kernel", 32))
    for i in range(OPT.get("dummy", 0)):
        out += f"; @launch kernel=dummy_kernel grid=(1,1,1) block=(64,1,1) lds=0\n"
    if OPT.get("dummy", 0):
        kernel_begin(a, "dummy_kernel")
        a("s_endpgm")
        descs.append(kernel_desc("dummy_kernel", 8))
    out += a.text()
    out += '.section .rodata,"a"\n'
    for d in descs:
        out += ".p2align 6\n" + d
    path = ARGS[0] if ARGS else "cdna_kernels/" + NAME + ".s"
    open(path, "w").write(out)


if __name__ == "__main__":
    main()
```

```python
import struct
import sys

NAME = "parallel_sum__spectral_fnet__geglu_ffn__prompt"
OPT = {}

WS_XN = 0
WS_WGU = 2 << 20
WS_B = 8 << 20
WS_H = 16 << 20
WS_PART = 32 << 20
WS_SIZE = 268435456

KA_X, KA_WSRE, KA_WSIM, KA_WDRE, KA_WDIM, KA_BX, KA_WG, KA_WU, KA_WDN, KA_OUT, KA_DBG, KA_WS = [8 * i for i in range(12)]


def f32bits(x):
    return struct.unpack("<I", struct.pack("<f", x))[0]


class Asm:
    def __init__(self):
        self.lines = []

    def __call__(self, s):
        for ln in s.strip("\n").split("\n"):
            self.lines.append("    " + ln.strip())

    def label(self, s):
        self.lines.append(s + ":")

    def raw(self, s):
        self.lines.append(s)

    def text(self):
        return "\n".join(self.lines) + "\n"


def kernel_begin(a, name):
    a.raw(f".globl {name}")
    a.raw(".p2align 8")
    a.raw(f".type {name},@function")
    a.label(name)


def kernel_desc(name, vgpr, sgpr=96):
    acc = (vgpr + 3) // 4 * 4
    return f""".amdhsa_kernel {name}
  .amdhsa_next_free_vgpr {vgpr}
  .amdhsa_next_free_sgpr {sgpr}
  .amdhsa_accum_offset {acc}
  .amdhsa_group_segment_fixed_size 0
  .amdhsa_kernarg_size 96
  .amdhsa_user_sgpr_count 2
  .amdhsa_user_sgpr_kernarg_segment_ptr 1
  .amdhsa_system_sgpr_workgroup_id_x 1
  .amdhsa_float_denorm_mode_32 3
.end_amdhsa_kernel
"""


def srd(a, d, base, off, size):
    if off:
        a(f"s_add_u32 s{d}, s{base}, {off}")
        a(f"s_addc_u32 s{d+1}, s{base+1}, 0")
    else:
        a(f"s_mov_b32 s{d}, s{base}")
        a(f"s_mov_b32 s{d+1}, s{base+1}")
    a(f"s_mov_b32 s{d+2}, {size}")
    a(f"s_mov_b32 s{d+3}, 0x00020000")


N_LN = 2048
N_WGU = 22 * 64
N_WD = 8 * 176
N_PF = 0
PREP_WGS = 0


def gen_prep(a):
    global N_PF, PREP_WGS
    N_PF = 1024 if OPT.get("pf", 0) == 1 else 0
    PREP_WGS = (N_LN + N_WGU + N_WD + N_PF) // 4
    name = "prep_kernel"
    kernel_begin(a, name)
    PSTAMP = ""
    if OPT.get("stamp"):
        PSTAMP = f"""
    s_memrealtime s[40:41]
    s_add_u32 s44, s14, {59 << 20}
    s_addc_u32 s45, s15, 0
    s_mov_b32 s46, 65536
    s_mov_b32 s47, 0x00020000
    s_lshl_b32 s48, s16, 2
    s_add_u32 s49, s48, 32768
    s_waitcnt lgkmcnt(0)
    v_mov_b32 v30, s40
    v_mov_b32 v31, 0
    buffer_store_dword v30, v31, s[44:47], s48 offen
    """
    a(f"""
    s_cmp_ge_u32 s2, {PREP_WGS}
    s_cbranch_scc1 L_prep_end
    s_load_dwordx2 s[4:5], s[0:1], {KA_X}
    s_load_dwordx4 s[8:11], s[0:1], {KA_WG}
    s_load_dwordx2 s[12:13], s[0:1], {KA_WDN}
    s_load_dwordx2 s[14:15], s[0:1], {KA_WS}
    v_lshrrev_b32 v1, 6, v0
    v_and_b32 v2, 63, v0
    s_nop 0
    v_readfirstlane_b32 s3, v1
    s_lshl_b32 s16, s2, 2
    s_nop 3
    s_add_u32 s16, s16, s3
    s_waitcnt lgkmcnt(0)
    {PSTAMP}
    s_cmp_lt_u32 s16, {N_PF}
    s_cbranch_scc1 L_prep_pf
    s_sub_u32 s16, s16, {N_PF}
    s_cmp_ge_u32 s16, {N_LN}
    s_cbranch_scc1 L_prep_wgu
    """)
    srd(a, 20, 4, 0, 2048 * 1024)
    srd(a, 24, 14, WS_XN, 2048 * 1024)
    a("""
    s_lshl_b32 s17, s16, 10
    v_lshlrev_b32 v3, 4, v2
    buffer_load_dwordx4 v[4:7], v3, s[20:23], s17 offen
    v_lshlrev_b32 v30, 2, v2
    v_xor_b32 v31, 4, v30
    v_xor_b32 v32, 8, v30
    v_xor_b32 v33, 16, v30
    v_xor_b32 v34, 32, v30
    v_xor_b32 v35, 64, v30
    v_xor_b32 v36, 128, v30
    s_waitcnt vmcnt(0)
    """)
    for i in range(4):
        a(f"v_lshlrev_b32 v{8+2*i}, 16, v{4+i}")
        a(f"v_and_b32 v{9+2*i}, 0xffff0000, v{4+i}")
    a("""
    v_add_f32 v16, v8, v9
    v_add_f32 v17, v10, v11
    v_add_f32 v18, v12, v13
    v_add_f32 v19, v14, v15
    v_add_f32 v16, v16, v17
    v_add_f32 v18, v18, v19
    v_add_f32 v16, v16, v18
    """)
    for r in range(31, 37):
        a(f"""
        ds_bpermute_b32 v17, v{r}, v16
        s_waitcnt lgkmcnt(0)
        v_add_f32 v16, v16, v17
        """)
    a(f"v_mul_f32 v16, 0x{f32bits(1.0/512):08x}, v16")
    for i in range(8):
        a(f"v_sub_f32 v{20+i}, v{8+i}, v16")
    a("v_mul_f32 v17, v20, v20")
    for i in range(1, 8):
        a(f"v_fmac_f32 v17, v{20+i}, v{20+i}")
    for r in range(31, 37):
        a(f"""
        ds_bpermute_b32 v18, v{r}, v17
        s_waitcnt lgkmcnt(0)
        v_add_f32 v17, v17, v18
        """)
    a(f"""
    v_mul_f32 v17, 0x{f32bits(1.0/512):08x}, v17
    v_cvt_pk_bf16_f32 v18, v16, v17
    v_lshlrev_b32 v16, 16, v18
    v_and_b32 v17, 0xffff0000, v18
    v_add_f32 v17, 0x{f32bits(1e-5):08x}, v17
    v_cvt_pk_bf16_f32 v18, v17, v17
    v_lshlrev_b32 v17, 16, v18
    v_sqrt_f32 v17, v17
    s_nop 0
    v_cvt_pk_bf16_f32 v18, v17, v17
    v_lshlrev_b32 v17, 16, v18
    v_rcp_f32 v19, v17
    """)
    for i in range(8):
        a(f"v_sub_f32 v{20+i}, v{8+i}, v16")
    for i in range(4):
        a(f"v_cvt_pk_bf16_f32 v{4+i}, v{20+2*i}, v{21+2*i}")
    for i in range(4):
        a(f"v_lshlrev_b32 v{8+2*i}, 16, v{4+i}")
        a(f"v_and_b32 v{9+2*i}, 0xffff0000, v{4+i}")
    for i in range(8):
        a(f"v_mul_f32 v{20+i}, v{8+i}, v19")
    for i in range(8):
        a(f"v_fma_f32 v{8+i}, -v{20+i}, v17, v{8+i}")
    for i in range(8):
        a(f"v_fmac_f32 v{20+i}, v{8+i}, v19")
    for i in range(4):
        a(f"v_cvt_pk_bf16_f32 v{4+i}, v{20+2*i}, v{21+2*i}")
    a("""
    buffer_store_dwordx4 v[4:7], v3, s[24:27], s17 offen
    """)
    if OPT.get("stamp"):
        a("""
        s_waitcnt vmcnt(0)
        s_memrealtime s[40:41]
        s_waitcnt lgkmcnt(0)
        v_mov_b32 v30, s40
        v_mov_b32 v31, 0
        buffer_store_dword v30, v31, s[44:47], s49 offen
        """)
    a("s_endpgm")
    a.label("L_prep_wgu")
    a(f"""
    s_cmp_ge_u32 s16, {N_LN + N_WGU}
    s_cbranch_scc1 L_prep_wd
    s_sub_u32 s16, s16, {N_LN}
    s_lshr_b32 s17, s16, 6
    s_and_b32 s18, s16, 63
    """)
    srd(a, 20, 8, 0, 512 * 2752)
    srd(a, 24, 10, 0, 512 * 2752)
    srd(a, 28, 14, WS_WGU, 2816 * 1024)
    a("""
    s_lshl_b32 s19, s17, 6
    v_add_u32 v3, s19, v2
    v_lshlrev_b32 v4, 1, v3
    s_mul_i32 s32, s18, 22016
    """)
    for j in range(8):
        a(f"buffer_load_ushort v{16+j}, v4, s[20:23], s32 offen")
        a(f"buffer_load_ushort v{24+j}, v4, s[24:27], s32 offen")
        if j < 7:
            a("s_add_u32 s32, s32, 2752")
    a("""
    v_lshrrev_b32 v5, 5, v3
    v_lshlrev_b32 v5, 6, v5
    v_and_b32 v6, 31, v3
    v_add_u32 v5, v5, v6
    v_lshlrev_b32 v5, 10, v5
    s_lshl_b32 s33, s18, 4
    v_mov_b32 v7, 1376
    v_cmp_gt_u32 vcc, v7, v3
    s_waitcnt vmcnt(0)
    """)
    for j in range(8):
        a(f"v_lshl_or_b32 v{8+j}, v{17+2*j}, 16, v{16+2*j}")
    for j in range(8):
        a(f"v_cndmask_b32 v{8+j}, 0, v{8+j}, vcc")
    a("""
    buffer_store_dwordx4 v[8:11], v5, s[28:31], s33 offen
    s_add_u32 s33, s33, 32768
    buffer_store_dwordx4 v[12:15], v5, s[28:31], s33 offen
    """)
    if OPT.get("stamp"):
        a("""
        s_waitcnt vmcnt(0)
        s_memrealtime s[40:41]
        s_waitcnt lgkmcnt(0)
        v_mov_b32 v30, s40
        v_mov_b32 v31, 0
        buffer_store_dword v30, v31, s[44:47], s49 offen
        """)
    a("s_endpgm")
    a.label("L_prep_wd")
    a(f"""
    s_sub_u32 s16, s16, {N_LN + N_WGU}
    s_mul_hi_u32 s17, s16, {((1 << 32) + 175) // 176}
    s_mul_i32 s18, s17, 176
    s_sub_u32 s18, s16, s18
    """)
    srd(a, 20, 12, 0, 1376 * 1024)
    srd(a, 28, 14, WS_B + (4 << 20), 512 * 4096)
    a("""
    s_lshl_b32 s19, s17, 6
    v_add_u32 v3, s19, v2
    v_lshlrev_b32 v4, 1, v3
    s_lshl_b32 s32, s18, 13
    """)
    for j in range(8):
        a(f"buffer_load_ushort v{16+j}, v4, s[20:23], s32 offen")
        if j < 7:
            a("s_add_u32 s32, s32, 1024")
    a("""
    v_lshlrev_b32 v5, 12, v3
    s_lshl_b32 s33, s18, 4
    s_waitcnt vmcnt(0)
    """)
    for j in range(4):
        a(f"v_lshl_or_b32 v{8+j}, v{17+2*j}, 16, v{16+2*j}")
    a("""
    buffer_store_dwordx4 v[8:11], v5, s[28:31], s33 offen
    """)
    if OPT.get("stamp"):
        a("""
        s_waitcnt vmcnt(0)
        s_memrealtime s[40:41]
        s_waitcnt lgkmcnt(0)
        v_mov_b32 v30, s40
        v_mov_b32 v31, 0
        buffer_store_dword v30, v31, s[44:47], s49 offen
        """)
    a("s_endpgm")
    a.label("L_prep_pf")
    a(f"""
    s_load_dwordx4 s[20:23], s[0:1], {KA_WSRE}
    s_lshl_b32 s17, s16, 13
    v_lshlrev_b32 v3, 4, v2
    s_waitcnt lgkmcnt(0)
    """)
    srd(a, 24, 20, 0, 2048 * 4096)
    srd(a, 28, 22, 0, 2048 * 4096)
    for i in range(8):
        a(f"buffer_load_dwordx4 v[{4+4*(i%4)}:{7+4*(i%4)}], v3, s[24:27], s17 offen")
        a(f"buffer_load_dwordx4 v[{20+4*(i%4)}:{23+4*(i%4)}], v3, s[28:31], s17 offen")
        a("s_add_u32 s17, s17, 1024")
    a.label("L_prep_end")
    a("s_endpgm")
    return kernel_desc(name, 40)


S_SRDP = 4
S_SRDQ = 8
S_OFFP = 12
S_OFFQ = 13
S_WOFF = 14
S_N = 15
S_NEND = 16
S_JL = 17
S_JEND = 18
S_WAVE = 19
S_WOFFQ = 39


def stamp(a, k):
    if OPT.get("stamp"):
        a(f"s_memrealtime s[{74+2*k}:{75+2*k}]")


def stamp_flush(a, pfx, T, n=8):
    if OPT.get("stamp"):
        a("s_waitcnt lgkmcnt(0)")
        srd(a, 68, 44, (62 << 20) + (0 if pfx == "L_g1" else (1 << 20)), 1 << 20)
        a(f"""
        s_lshl_b32 s72, s2, 3
        s_add_u32 s72, s72, s{S_WAVE}
        s_lshl_b32 s72, s72, 6
        v_mov_b32 v{T}, 0
        """)
        for i in range(2 * n):
            a(f"v_mov_b32 v{T+1}, s{74+i}")
            a(f"buffer_store_dword v{T+1}, v{T}, s[68:71], s72 offen offset:{4*i}")


class Core:
    def __init__(self, MT, NS):
        self.MT, self.NS = MT, NS
        self.BM = 64 * MT
        self.PSZ = self.BM * 128
        self.QSZ = 16384
        self.QBASE = NS * self.PSZ
        self.LDS = self.QBASE + NS * self.QSZ
        self.NPI = self.BM // 32
        self.NDMA = self.NPI + 4
        self.V_LDP = 4
        self.V_LDQ = 12
        self.M16 = bool(OPT.get("m16", 0))
        self.V_FA = 4
        if self.M16:
            self.PA = 4
            self.PB = self.PA + MT * 4
            self.QA = self.PB + MT * 4
            self.QB = self.QA + 16
            self.V_ACC = self.QB + 16
            nkk, fr = 2, 2048
            nP, nQ = 2 * MT, 4
        else:
            self.FS = (MT + 2) * 4
            self.V_FB = self.V_FA + self.FS
            self.V_ACC = self.V_FB + self.FS
            nkk, fr = 4, 4096
            nP, nQ = MT, 2
        self.V_RD = self.V_ACC + MT * 32
        self.rd = {}
        n = 0
        for op, base, ssz, nt in (("P", 0, self.PSZ, nP), ("Q", self.QBASE, self.QSZ, nQ)):
            wins = sorted({(base + st * ssz + t * fr) >> 16 for st in range(NS) for t in range(nt)})
            for w in wins:
                for kk in range(nkk):
                    self.rd[(op, kk, w)] = self.V_RD + n
                    n += 1
        self.V_TMP = (self.V_RD + n + 1) // 2 * 2
        self.LN_MASK = 15 if self.M16 else 31
        self.LM_SHIFT = 4 if self.M16 else 5

    def acc(self, mt, nt):
        return self.V_ACC + (mt * 2 + nt) * 16

    def accs(self, mt, nt):
        b = self.acc(mt, nt)
        return f"v[{b}:{b+15}]"

    def acc16(self, mi, ni):
        return self.V_ACC + ((mi >> 1) * 2 + (ni >> 1)) * 16 + ((mi & 1) * 2 + (ni & 1)) * 4

    def quads(self):
        out = []
        if self.M16:
            for mi in range(2 * self.MT):
                for ni in range(4):
                    out.append((self.acc16(mi, ni), mi * 16, ni * 16))
        else:
            for mt in range(self.MT):
                for nt in range(2):
                    for q in range(4):
                        out.append((self.acc(mt, nt) + 4 * q, mt * 32 + 8 * q, nt * 32))
        return out

    def setup_loader(self, a, rowP_s, rowQ_s, strideP, strideQ):
        t = 20
        rq = self.BM // 4
        a(f"""
        s_sub_u32 s{S_WOFF}, s{S_WAVE}, 4
        s_lshl_b32 s{S_WOFFQ}, s{S_WOFF}, 12
        s_mul_i32 s30, s{S_WOFF}, {rq}
        s_lshl_b32 s31, s{S_WOFF}, 5
        s_mul_i32 s{S_WOFF}, s{S_WOFF}, {rq*128}
        v_lshrrev_b32 v{t}, 3, v1
        v_and_b32 v{t+2}, 7, v1
        v_lshrrev_b32 v{t+3}, 4, v1
        v_xor_b32 v{t+2}, v{t+2}, v{t+3}
        """)
        for (vld, row_s, stride, n, sw) in ((self.V_LDP, rowP_s, strideP, self.NPI, 30), (self.V_LDQ, rowQ_s, strideQ, 4, 31)):
            sh = stride.bit_length() - 1
            assert 1 << sh == stride
            for i in range(n):
                a(f"v_add_u32 v{t+4}, s{row_s}, v{t}")
                a(f"v_add_u32 v{t+4}, s{sw}, v{t+4}")
                if i:
                    a(f"v_add_u32 v{t+4}, {8*i}, v{t+4}")
                a(f"v_lshlrev_b32 v{t+4}, {sh}, v{t+4}")
                if i & 1:
                    a(f"v_xor_b32 v{t+5}, 4, v{t+2}")
                else:
                    a(f"v_mov_b32 v{t+5}, v{t+2}")
                a(f"v_lshlrev_b32 v{t+5}, 4, v{t+5}")
                a(f"v_add_u32 v{vld+i}, v{t+4}, v{t+5}")
                if i & 3:
                    a(f"v_subrev_u32 v{vld+i}, {1024*(i&3)}, v{vld+i}")

    def setup_compute(self, a):
        t = self.V_TMP
        if self.M16:
            a(f"""
            v_and_b32 v{t}, 15, v1
            v_lshrrev_b32 v{t+1}, 4, v1
            v_lshrrev_b32 v{t+2}, 1, v{t}
            v_xor_b32 v{t+2}, v{t+2}, v{t+1}
            """)
        else:
            a(f"""
            v_and_b32 v{t}, 31, v1
            v_lshrrev_b32 v{t+1}, 5, v1
            v_lshrrev_b32 v{t+2}, 1, v1
            v_and_b32 v{t+2}, 7, v{t+2}
            v_xor_b32 v{t+2}, v{t+2}, v{t+1}
            """)
        a(f"""
        v_lshrrev_b32 v{t+3}, 1, v2
        v_mul_u32_u24 v{t+3}, {self.MT*32}, v{t+3}
        v_add_u32 v{t+3}, v{t+3}, v{t}
        v_lshlrev_b32 v{t+3}, 7, v{t+3}
        v_and_b32 v{t+4}, 1, v2
        v_lshlrev_b32 v{t+4}, 6, v{t+4}
        v_add_u32 v{t+4}, v{t+4}, v{t}
        v_lshlrev_b32 v{t+4}, 7, v{t+4}
        """)
        for (op, kk, w), r in self.rd.items():
            a(f"v_xor_b32 v{t+5}, {(4 if self.M16 else 2)*kk}, v{t+2}")
            a(f"v_lshlrev_b32 v{t+5}, 4, v{t+5}")
            a(f"v_add_u32 v{r}, v{t+3 if op == 'P' else t+4}, v{t+5}")
            if w:
                a(f"v_add_u32 v{r}, {w << 16}, v{r}")
        for i in range(self.MT * 32):
            a(f"v_mov_b32 v{self.V_ACC+i}, 0")

    def rdP16(self, a, dst, stage, kk, mh):
        for j in range(self.MT):
            off = stage * self.PSZ + (mh * self.MT + j) * 2048
            a(f"ds_read_b128 v[{dst+4*j}:{dst+4*j+3}], v{self.rd[('P', kk, off >> 16)]} offset:{off & 0xffff}")

    def rdQ16(self, a, dst, stage, kk):
        for j in range(4):
            off = self.QBASE + stage * self.QSZ + j * 2048
            a(f"ds_read_b128 v[{dst+4*j}:{dst+4*j+3}], v{self.rd[('Q', kk, off >> 16)]} offset:{off & 0xffff}")

    def mfma16(self, a, P, Q, mh):
        for j in range(self.MT):
            for ni in range(4):
                r = self.acc16(mh * self.MT + j, ni)
                a(f"v_mfma_f32_16x16x32_bf16 v[{r}:{r+3}], v[{P+4*j}:{P+4*j+3}], v[{Q+4*ni}:{Q+4*ni+3}], v[{r}:{r+3}]")

    def dma(self, a, stage):
        for i in range(self.NPI):
            if i % 4 == 0:
                a(f"s_add_u32 m0, s{S_WOFF}, {stage*self.PSZ + i*1024}")
                a("s_nop 0")
            a(f"buffer_load_dwordx4 v{self.V_LDP+i}, s[{S_SRDP}:{S_SRDP+3}], s{S_OFFP} offen offset:{1024*(i&3)} lds")
        a(f"s_add_u32 m0, s{S_WOFFQ}, {self.QBASE + stage*self.QSZ}")
        a("s_nop 0")
        for i in range(4):
            a(f"buffer_load_dwordx4 v{self.V_LDQ+i}, s[{S_SRDQ}:{S_SRDQ+3}], s{S_OFFQ} offen offset:{1024*i} lds")

    def reads(self, a, fset, stage, kk):
        for mt in range(self.MT):
            off = stage * self.PSZ + mt * 4096
            a(f"ds_read_b128 v[{fset+4*mt}:{fset+4*mt+3}], v{self.rd[('P', kk, off >> 16)]} offset:{off & 0xffff}")
        for nt in range(2):
            off = self.QBASE + stage * self.QSZ + nt * 4096
            qb = fset + 4 * self.MT + 4 * nt
            a(f"ds_read_b128 v[{qb}:{qb+3}], v{self.rd[('Q', kk, off >> 16)]} offset:{off & 0xffff}")

    def mfma(self, a, fset):
        for mt in range(self.MT):
            for nt in range(2):
                qb = fset + 4 * self.MT + 4 * nt
                if not OPT.get("nomfma"):
                    a(f"v_mfma_f32_32x32x16_bf16 {self.accs(mt,nt)}, v[{fset+4*mt}:{fset+4*mt+3}], v[{qb}:{qb+3}], {self.accs(mt,nt)}")

    def body(self, a, pfx, step_setup, rowP_s, rowQ_s, strideP, strideQ, tail=None, pre=None, filler=None):
        NS = self.NS
        nr = self.MT + 2
        a(f"""
        v_and_b32 v1, 63, v0
        v_lshrrev_b32 v2, 6, v0
        s_nop 0
        v_readfirstlane_b32 s{S_WAVE}, v2
        s_nop 3
        s_mov_b32 s{S_N}, 0
        s_cmp_lt_u32 s{S_WAVE}, 4
        s_cbranch_scc1 {pfx}_compute
        """)

        self.setup_loader(a, rowP_s, rowQ_s, strideP, strideQ)
        for st in range(NS - 1):
            step_setup(a)
            self.dma(a, st)
        a(f"""
        s_waitcnt vmcnt({(NS-2)*self.NDMA})
        s_barrier
        """)
        a.label(f"{pfx}_lloop")
        for u in range(NS):
            a(f"s_cmp_ge_u32 s{S_JL}, s{S_JEND}")
            a(f"s_cbranch_scc1 {pfx}_lskip{u}")
            step_setup(a)
            self.dma(a, (u + NS - 1) % NS)
            a(f"s_waitcnt vmcnt({(NS-2)*self.NDMA})")
            a(f"s_branch {pfx}_lbar{u}")
            a.label(f"{pfx}_lskip{u}")
            a("s_waitcnt vmcnt(0)")
            a.label(f"{pfx}_lbar{u}")
            a("s_barrier")
            a(f"s_add_u32 s{S_N}, s{S_N}, 1")
            a(f"s_cmp_ge_u32 s{S_N}, s{S_NEND}")
            if u < NS - 1:
                a(f"s_cbranch_scc1 {pfx}_ldone")
            else:
                a(f"s_cbranch_scc0 {pfx}_lloop")
        a.label(f"{pfx}_ldone")
        a("s_endpgm")
        a.label(f"{pfx}_compute")
        self.setup_compute(a)
        if pre:
            pre(a)
        a("s_barrier")
        if OPT.get("stamp"):
            a("s_memtime s[60:61]")
            a("s_memrealtime s[62:63]")
            a("s_memrealtime s[76:77]")
            a("s_waitcnt lgkmcnt(0)")
        MT = self.MT
        if self.M16:
            self.rdP16(a, self.PA, 0, 0, 0)
            self.rdQ16(a, self.QA, 0, 0)
        else:
            self.reads(a, self.V_FA, 0, 0)
        a.label(f"{pfx}_loop")
        for u in range(NS):
            if self.M16:
                self.rdP16(a, self.PB, u, 0, 1)
                a(f"s_waitcnt lgkmcnt({MT})")
                self.mfma16(a, self.PA, self.QA, 0)
                if filler:
                    filler(a)
                self.rdP16(a, self.PA, u, 1, 0)
                self.rdQ16(a, self.QB, u, 1)
                a(f"s_waitcnt lgkmcnt({MT+4})")
                self.mfma16(a, self.PB, self.QA, 1)
                self.rdP16(a, self.PB, u, 1, 1)
                a(f"s_waitcnt lgkmcnt({MT})")
                self.mfma16(a, self.PA, self.QB, 0)
                if filler:
                    filler(a)
                a("s_waitcnt lgkmcnt(0)")
                a("s_barrier")
                self.rdP16(a, self.PA, (u + 1) % NS, 0, 0)
                self.rdQ16(a, self.QA, (u + 1) % NS, 0)
                self.mfma16(a, self.PB, self.QB, 1)
            else:
                self.reads(a, self.V_FB, u, 1)
                a(f"s_waitcnt lgkmcnt({nr})")
                self.mfma(a, self.V_FA)
                if filler:
                    filler(a)
                self.reads(a, self.V_FA, u, 2)
                a(f"s_waitcnt lgkmcnt({nr})")
                self.mfma(a, self.V_FB)
                self.reads(a, self.V_FB, u, 3)
                a(f"s_waitcnt lgkmcnt({nr})")
                self.mfma(a, self.V_FA)
                if filler:
                    filler(a)
                a("s_waitcnt lgkmcnt(0)")
                a("s_barrier")
                self.reads(a, self.V_FA, (u + 1) % NS, 0)
                self.mfma(a, self.V_FB)
            a(f"s_add_u32 s{S_N}, s{S_N}, 1")
            a(f"s_cmp_ge_u32 s{S_N}, s{S_NEND}")
            if u < NS - 1:
                a(f"s_cbranch_scc1 {pfx}_done")
            else:
                a(f"s_cbranch_scc0 {pfx}_loop")
        a.label(f"{pfx}_done")
        a("s_waitcnt lgkmcnt(0)")
        a("s_nop 15")
        if OPT.get("stamp"):
            T = self.V_TMP
            a("s_memtime s[64:65]")
            a("s_memrealtime s[66:67]")
            a("s_memrealtime s[78:79]")
            a("s_waitcnt lgkmcnt(0)")
            srd(a, 68, 44, (60 << 20) + (0 if pfx == "L_g1" else (1 << 20)), 1 << 20)
            a(f"""
            s_lshl_b32 s72, s2, 3
            s_add_u32 s72, s72, s{S_WAVE}
            s_lshl_b32 s72, s72, 5
            v_mov_b32 v{T}, 0
            """)
            for i in range(8):
                a(f"v_mov_b32 v{T+1}, s{60+i}")
                a(f"buffer_store_dword v{T+1}, v{T}, s[68:71], s72 offen offset:{4*i}")


G1 = None
G1_WGS = 240


def gen_gemm1(a):
    global G1
    C = G1 = Core(4, 3)
    name = "gemm1_kernel"
    kernel_begin(a, name)
    a(f"""
    s_cmp_ge_u32 s2, {G1_WGS}
    s_cbranch_scc1 L_g1_end
    {"s_memrealtime s[74:75]" if OPT.get("stamp") else ""}
    s_cmp_ge_u32 s2, 240
    s_cbranch_scc1 L_g1_pf
    s_load_dwordx4 s[40:43], s[0:1], {KA_WDRE}
    s_load_dwordx2 s[44:45], s[0:1], {KA_WS}
    s_waitcnt lgkmcnt(0)
    s_cmp_ge_u32 s2, 64
    s_cbranch_scc1 L_g1_ffn
    """)
    srd(a, S_SRDP, 44, WS_XN, 2048 * 1024)
    a("""
    s_lshr_b32 s21, s2, 3
    s_and_b32 s24, s2, 7
    s_lshl_b32 s24, s24, 8
    s_cmp_ge_u32 s21, 4
    s_cselect_b64 s[46:47], s[42:43], s[40:41]
    s_and_b32 s25, s21, 3
    s_lshl_b32 s25, s25, 7
    """)
    srd(a, S_SRDQ, 46, 0, 512 * 1024)
    a("s_branch L_g1_main")
    a.label("L_g1_ffn")
    srd(a, S_SRDP, 44, WS_WGU, 2816 * 1024)
    srd(a, S_SRDQ, 44, WS_XN, 2048 * 1024)
    a("""
    s_sub_u32 s23, s2, 64
    s_and_b32 s25, s23, 15
    s_lshl_b32 s25, s25, 7
    s_lshr_b32 s24, s23, 4
    s_lshl_b32 s24, s24, 8
    s_mov_b32 s21, 8
    """)
    a.label("L_g1_main")
    a(f"""
    s_mov_b32 s26, s{S_SRDP+2}
    s_mov_b32 s27, s{S_SRDQ+2}
    s_mov_b32 s{S_JL}, 0
    s_mov_b32 s{S_JEND}, 8
    s_mov_b32 s{S_NEND}, 8
    """)

    def step_setup(a):
        a(f"""
        s_lshl_b32 s{S_OFFP}, s{S_JL}, 7
        s_mov_b32 s{S_OFFQ}, s{S_OFFP}
        s_cmp_lt_u32 s{S_JL}, s{S_JEND}
        s_cselect_b32 s{S_SRDP+2}, s26, 0
        s_cselect_b32 s{S_SRDQ+2}, s27, 0
        s_add_u32 s{S_JL}, s{S_JL}, 1
        """)

    PFV = C.V_TMP + 12

    def pre(a):
        a(f"""
        s_load_dwordx4 s[48:51], s[0:1], {KA_WSRE}
        s_lshl_b32 s38, s2, 2
        s_add_u32 s38, s38, s{S_WAVE}
        s_lshl_b32 s38, s38, 10
        v_lshlrev_b32 v{PFV+8}, 4, v1
        s_waitcnt lgkmcnt(0)
        """)
        srd(a, 52, 48, 0, 2048 * 4096)
        srd(a, 56, 50, 0, 2048 * 4096)

    def filler(a):
        a(f"buffer_load_dwordx4 v[{PFV}:{PFV+3}], v{PFV+8}, s[52:55], s38 offen")
        a(f"buffer_load_dwordx4 v[{PFV+4}:{PFV+7}], v{PFV+8}, s[56:59], s38 offen")
        a(f"s_add_u32 s38, s38, {960*1024}")

    if OPT.get("pf", 0) == 2:
        C.body(a, "L_g1", step_setup, 24, 25, 1024, 1024, None, pre, filler)
    else:
        C.body(a, "L_g1", step_setup, 24, 25, 1024, 1024)
    t = C.V_TMP
    a(f"""
    v_and_b32 v{t}, {C.LN_MASK}, v1
    v_lshrrev_b32 v{t+1}, {C.LM_SHIFT}, v1
    s_lshr_b32 s28, s{S_WAVE}, 1
    s_and_b32 s29, s{S_WAVE}, 1
    s_cmp_ge_u32 s21, 8
    s_cbranch_scc1 L_g1_epi_ffn
    """)
    RS = 272
    a(f"""
    s_lshr_b32 s30, s21, 2
    s_lshl_b32 s30, s30, 21
    s_add_u32 s30, s30, {WS_B}
    s_add_u32 s32, s44, s30
    s_addc_u32 s33, s45, 0
    s_mov_b32 s34, {512*4096}
    s_mov_b32 s35, 0x00020000
    s_mul_i32 s36, s{S_WAVE}, {64*RS}
    v_mul_u32_u24 v{t+2}, {RS}, v{t}
    v_lshlrev_b32 v{t+3}, 3, v{t+1}
    v_add3_u32 v{t+2}, v{t+2}, v{t+3}, s36
    s_cmp_ge_u32 s21, 4
    s_cselect_b32 s31, 0x80008000, 0
    s_barrier
    """)
    k = 0
    for (b, moff, noff) in C.quads():
        r = t + 4 + 2 * (k % 4)
        k += 1
        a(f"v_cvt_pk_bf16_f32 v{r}, v{b}, v{b+1}")
        a(f"v_cvt_pk_bf16_f32 v{r+1}, v{b+2}, v{b+3}")
        a(f"v_xor_b32 v{r}, s31, v{r}")
        a(f"v_xor_b32 v{r+1}, s31, v{r+1}")
        a(f"ds_write_b64 v{t+2}, v[{r}:{r+1}] offset:{noff*RS + moff*2}")
    a(f"""
    v_lshrrev_b32 v{t+3}, 4, v1
    v_and_b32 v{t+4}, 15, v1
    v_lshlrev_b32 v{t+4}, 4, v{t+4}
    v_mul_u32_u24 v{t+5}, {RS}, v{t+3}
    v_add3_u32 v{t+5}, v{t+5}, v{t+4}, s36
    v_lshlrev_b32 v{t+3}, 12, v{t+3}
    v_add_u32 v{t+3}, v{t+3}, v{t+4}
    s_lshl_b32 s30, s29, 6
    s_add_u32 s30, s30, s25
    s_lshl_b32 s30, s30, 12
    s_lshl_b32 s37, s28, 7
    s_add_u32 s37, s37, s24
    s_lshl_b32 s37, s37, 1
    s_add_u32 s30, s30, s37
    s_waitcnt lgkmcnt(0)
    """)
    for i in range(16):
        a(f"ds_read_b128 v[{C.V_ACC+4*i}:{C.V_ACC+4*i+3}], v{t+5} offset:{i*4*RS}")
    for i in range(16):
        a(f"s_waitcnt lgkmcnt({15-i})")
        a(f"buffer_store_dwordx4 v[{C.V_ACC+4*i}:{C.V_ACC+4*i+3}], v{t+3}, s[32:35], s30 offen")
        a("s_add_u32 s30, s30, 0x4000")
    if OPT.get("stamp"):
        stamp(a, 3)
        a("s_waitcnt vmcnt(0)")
        stamp(a, 4)
        stamp_flush(a, "L_g1", t + 4)
    a("s_endpgm")
    a.label("L_g1_epi_ffn")
    srd(a, 32, 44, WS_H, 2048 * 4096)
    c0 = -2.0 * 0.7978845608028654 * 1.4426950408889634
    c1 = c0 * 0.044715
    RS2 = 144
    a(f"""
    s_mul_i32 s36, s{S_WAVE}, {64*RS2}
    v_mul_u32_u24 v{t+2}, {RS2}, v{t}
    v_lshlrev_b32 v{t+3}, 3, v{t+1}
    v_add3_u32 v{t+2}, v{t+2}, v{t+3}, s36
    v_mov_b32 v{t+4}, 0x{f32bits(c0):08x}
    v_mov_b32 v{t+5}, 0x{f32bits(c0):08x}
    v_mov_b32 v{t+10}, 0x{f32bits(c1):08x}
    v_mov_b32 v{t+11}, 0x{f32bits(c1):08x}
    s_barrier
    """)
    k = 0
    qd = {(m, n): r for (r, m, n) in C.quads()}
    for (G0, moff, noff) in C.quads():
        if moff % 64 >= 32:
            continue
        U0 = qd[(moff + 32, noff)]
        foff = (moff // 64) * 32 + moff % 64
        for _once in range(1):
            for _once2 in range(1):
                g = 4 + 8 * (k % 2)
                o = t + 6 + 2 * (k % 2)
                k += 1
                for p in range(2):
                    a(f"v_pk_mul_f32 v[{g+2*p}:{g+2*p+1}], v[{G0+2*p}:{G0+2*p+1}], v[{G0+2*p}:{G0+2*p+1}]")
                for p in range(2):
                    a(f"v_pk_fma_f32 v[{g+2*p}:{g+2*p+1}], v[{g+2*p}:{g+2*p+1}], v[{t+10}:{t+11}], v[{t+4}:{t+5}]")
                for p in range(2):
                    a(f"v_pk_mul_f32 v[{g+2*p}:{g+2*p+1}], v[{g+2*p}:{g+2*p+1}], v[{G0+2*p}:{G0+2*p+1}]")
                for r in range(4):
                    a(f"v_exp_f32 v{g+r}, v{g+r}")
                for p in range(2):
                    a(f"v_pk_mul_f32 v[{g+4+2*p}:{g+4+2*p+1}], v[{G0+2*p}:{G0+2*p+1}], v[{U0+2*p}:{U0+2*p+1}]")
                for p in range(2):
                    a(f"v_pk_add_f32 v[{g+2*p}:{g+2*p+1}], v[{g+2*p}:{g+2*p+1}], 1.0 op_sel_hi:[1,0]")
                for r in range(4):
                    a(f"v_rcp_f32 v{g+r}, v{g+r}")
                a("s_nop 0")
                for p in range(2):
                    a(f"v_pk_mul_f32 v[{g+2*p}:{g+2*p+1}], v[{g+2*p}:{g+2*p+1}], v[{g+4+2*p}:{g+4+2*p+1}]")
                a(f"v_cvt_pk_bf16_f32 v{o}, v{g}, v{g+1}")
                a(f"v_cvt_pk_bf16_f32 v{o+1}, v{g+2}, v{g+3}")
                a(f"ds_write_b64 v{t+2}, v[{o}:{o+1}] offset:{noff*RS2 + foff*2}")
    a(f"""
    v_lshrrev_b32 v{t+3}, 3, v1
    v_and_b32 v{t+4}, 7, v1
    v_lshlrev_b32 v{t+4}, 4, v{t+4}
    v_mul_u32_u24 v{t+5}, {RS2}, v{t+3}
    v_add3_u32 v{t+5}, v{t+5}, v{t+4}, s36
    v_lshlrev_b32 v{t+3}, 12, v{t+3}
    v_add_u32 v{t+3}, v{t+3}, v{t+4}
    s_lshl_b32 s30, s29, 6
    s_add_u32 s30, s30, s25
    s_lshl_b32 s30, s30, 12
    s_lshl_b32 s37, s28, 7
    s_add_u32 s37, s37, s24
    s_add_u32 s30, s30, s37
    s_waitcnt lgkmcnt(0)
    """)
    for i in range(8):
        a(f"ds_read_b128 v[{C.V_ACC+4*i}:{C.V_ACC+4*i+3}], v{t+5} offset:{i*8*RS2}")
    for i in range(8):
        a(f"s_waitcnt lgkmcnt({7-i})")
        a(f"buffer_store_dwordx4 v[{C.V_ACC+4*i}:{C.V_ACC+4*i+3}], v{t+3}, s[32:35], s30 offen")
        a("s_add_u32 s30, s30, 0x8000")
    if OPT.get("stamp"):
        stamp(a, 3)
        a("s_waitcnt vmcnt(0)")
        stamp(a, 4)
        stamp_flush(a, "L_g1", t + 6)
    a("s_endpgm")
    a.label("L_g1_pf")
    a(f"""
    s_load_dwordx4 s[48:51], s[0:1], {KA_WSRE}
    v_and_b32 v1, 63, v0
    v_lshrrev_b32 v2, 6, v0
    s_nop 0
    v_readfirstlane_b32 s3, v2
    s_sub_u32 s38, s2, 240
    s_lshl_b32 s38, s38, 3
    s_nop 2
    s_add_u32 s38, s38, s3
    s_lshl_b32 s38, s38, 16
    v_lshlrev_b32 v3, 4, v1
    s_mov_b32 s39, 0
    s_waitcnt lgkmcnt(0)
    """)
    srd(a, 52, 48, 0, 2048 * 4096)
    srd(a, 56, 50, 0, 2048 * 4096)
    a.label("L_g1_pfl")
    for i in range(4):
        a(f"buffer_load_dwordx4 v[{4+8*i}:{7+8*i}], v3, s[52:55], s38 offen offset:{1024*i}")
        a(f"buffer_load_dwordx4 v[{8+8*i}:{11+8*i}], v3, s[56:59], s38 offen offset:{1024*i}")
    a("""
    s_add_u32 s38, s38, 4096
    s_add_u32 s39, s39, 1
    s_cmp_lt_u32 s39, 16
    s_cbranch_scc1 L_g1_pfl
    """)
    a.label("L_g1_end")
    a("s_endpgm")
    return kernel_desc(name, C.V_TMP + 24)


G2 = None
G2_WGS = 256


def gen_gemm2(a):
    global G2
    C = G2 = Core(2, 4)
    name = "gemm2_kernel"
    kernel_begin(a, name)
    a(f"""
    s_cmp_ge_u32 s2, {G2_WGS}
    s_cbranch_scc1 L_g2_end
    {"s_memrealtime s[74:75]" if OPT.get("stamp") else ""}
    s_load_dwordx4 s[40:43], s[0:1], {KA_WSRE}
    s_load_dwordx2 s[44:45], s[0:1], {KA_WS}
    s_load_dwordx2 s[48:49], s[0:1], {KA_X}
    s_load_dwordx4 s[52:55], s[0:1], {KA_OUT}
    s_and_b32 s23, s2, 3
    s_lshr_b32 s20, s2, 2
    s_and_b32 s20, s20, 1
    s_lshl_b32 s20, s20, 3
    s_lshr_b32 s21, s2, 3
    s_and_b32 s22, s21, 7
    s_add_u32 s20, s20, s22
    s_lshr_b32 s22, s21, 3
    s_mul_i32 s{S_JL}, s23, 86
    s_add_u32 s{S_JEND}, s{S_JL}, 86
    s_lshr_b32 s{S_JL}, s{S_JL}, 2
    s_lshr_b32 s{S_JEND}, s{S_JEND}, 2
    s_sub_u32 s{S_NEND}, s{S_JEND}, s{S_JL}
    s_lshl_b32 s24, s22, 7
    s_lshl_b32 s25, s20, 7
    s_waitcnt lgkmcnt(0)
    """)
    srd(a, S_SRDP, 44, WS_B, 3 * 512 * 4096)
    a(f"""
    s_add_u32 s46, s44, {WS_H}
    s_addc_u32 s47, s45, 0
    s_mov_b32 s{S_SRDQ+3}, 0x00020000
    """)

    def step_setup(a):
        a(f"""
        s_lshr_b32 s26, s{S_JL}, 5
        s_and_b32 s{S_OFFQ}, s{S_JL}, 31
        s_lshl_b32 s{S_OFFQ}, s{S_OFFQ}, 7
        s_lshl_b32 s27, s26, 21
        s_add_u32 s{S_OFFP}, s{S_OFFQ}, s27
        s_cmp_eq_u32 s26, 0
        s_cselect_b64 s[{S_SRDQ}:{S_SRDQ+1}], s[40:41], s[42:43]
        s_cmp_ge_u32 s26, 2
        s_cselect_b64 s[{S_SRDQ}:{S_SRDQ+1}], s[46:47], s[{S_SRDQ}:{S_SRDQ+1}]
        s_cmp_lt_u32 s{S_JL}, s{S_JEND}
        s_cselect_b32 s{S_SRDP+2}, {3*512*4096}, 0
        s_cselect_b32 s{S_SRDQ+2}, {2048*4096}, 0
        s_add_u32 s{S_JL}, s{S_JL}, 1
        """)

    C.body(a, "L_g2", step_setup, 24, 25, 4096, 4096)
    t = C.V_TMP
    srd(a, 32, 44, WS_PART, 64 * 16 * 8192)
    a(f"""
    s_lshl_b32 s28, s20, 2
    s_add_u32 s28, s28, s22
    s_lshl_b32 s31, s{S_WAVE}, 11
    v_lshlrev_b32 v{t}, 4, v1
    """)
    for tl in range(4):
        a(f"""
        s_cmp_eq_u32 s23, {tl}
        s_cbranch_scc1 L_g2_pub{tl}
        s_lshl_b32 s30, s28, 2
        s_add_u32 s30, s30, {tl}
        s_lshl_b32 s30, s30, 2
        s_add_u32 s30, s30, s23
        s_lshl_b32 s30, s30, 13
        s_add_u32 s30, s30, s31
        """)
        b = C.V_ACC + tl * 16
        r = t + 4 + 8 * (tl & 1)
        for i in range(8):
            a(f"v_cvt_pk_bf16_f32 v{r+i}, v{b+2*i}, v{b+2*i+1}")
        a(f"buffer_store_dwordx4 v[{r}:{r+3}], v{t}, s[32:35], s30 offen sc1")
        a(f"buffer_store_dwordx4 v[{r+4}:{r+7}], v{t}, s[32:35], s30 offen offset:1024 sc1")
        a.label(f"L_g2_pub{tl}")
    srd(a, 56, 54, 0, 256)
    a("s_waitcnt vmcnt(0)")
    stamp(a, 3)
    a(f"""
    s_barrier
    s_cmp_lg_u32 s{S_WAVE}, 0
    s_cbranch_scc1 L_g2_wait
    s_lshl_b32 s29, s28, 2
    v_mov_b32 v{t+1}, 1
    v_mov_b32 v{t+2}, 0
    s_mov_b64 s[60:61], exec
    s_mov_b64 exec, 1
    buffer_atomic_add v{t+1}, v{t+2}, s[56:59], s29 offen
    """)
    a.label("L_g2_spin")
    a(f"""
    buffer_load_dword v{t+1}, v{t+2}, s[56:59], s29 offen sc1
    s_waitcnt vmcnt(0)
    v_readfirstlane_b32 s30, v{t+1}
    s_nop 3
    s_cmp_ge_u32 s30, 4
    s_cbranch_scc1 L_g2_spun
    s_sleep 1
    s_branch L_g2_spin
    """)
    a.label("L_g2_spun")
    a("s_mov_b64 exec, s[60:61]")
    a.label("L_g2_wait")
    a("s_barrier")
    stamp(a, 4)
    srd(a, 60, 48, 0, 2048 * 1024)
    srd(a, 64, 52, 0, 2048 * 1024)
    L = t + 4
    X = L + 24
    QOFF = [(n % 32) * 1024 + (m % 32) * 2 for (r, m, n) in sorted(C.quads()) if r < C.V_ACC + 16]
    assert len(QOFF) == 4 and max(QOFF) < 32768
    a(f"""
    s_and_b32 s36, s{S_WAVE}, 1
    s_lshl_b32 s36, s36, 1
    s_and_b32 s37, s23, 1
    s_add_u32 s36, s36, s37
    s_lshl_b32 s36, s36, 5
    s_add_u32 s36, s36, s25
    s_lshr_b32 s37, s{S_WAVE}, 1
    s_lshl_b32 s37, s37, 1
    s_lshr_b32 s38, s23, 1
    s_add_u32 s37, s37, s38
    s_lshl_b32 s37, s37, 5
    s_add_u32 s37, s37, s24
    v_and_b32 v{t+1}, {C.LN_MASK}, v1
    v_add_u32 v{t+1}, s36, v{t+1}
    v_lshlrev_b32 v{t+1}, 10, v{t+1}
    v_lshrrev_b32 v{t+2}, {C.LM_SHIFT}, v1
    v_lshlrev_b32 v{t+2}, 2, v{t+2}
    v_add_u32 v{t+2}, s37, v{t+2}
    v_lshlrev_b32 v{t+2}, 1, v{t+2}
    v_add_u32 v{t+1}, v{t+1}, v{t+2}
    s_lshl_b32 s38, s28, 2
    s_add_u32 s38, s38, s23
    s_lshl_b32 s38, s38, 2
    """)
    for i in range(1, 4):
        a(f"""
        s_add_u32 s30, s23, {i}
        s_and_b32 s30, s30, 3
        s_add_u32 s30, s30, s38
        s_lshl_b32 s30, s30, 13
        s_add_u32 s30, s30, s31
        """)
        r = L + (i - 1) * 8
        a(f"buffer_load_dwordx4 v[{r}:{r+3}], v{t}, s[32:35], s30 offen sc1")
        a(f"buffer_load_dwordx4 v[{r+4}:{r+7}], v{t}, s[32:35], s30 offen offset:1024 sc1")
    a("s_mov_b32 s36, 0")
    a("s_mov_b32 s37, 0x4000")
    for q in range(4):
        a(f"buffer_load_dwordx2 v[{X+2*q}:{X+2*q+1}], v{t+1}, s[60:63], s{36 + QOFF[q] // 16384} offen offset:{QOFF[q] % 16384}")
    for tl in range(3):
        a(f"s_cmp_eq_u32 s23, {tl}")
        a(f"s_cbranch_scc1 L_g2_fin{tl}")
    for tl in (3, 0, 1, 2):
        if tl != 3:
            a.label(f"L_g2_fin{tl}")
        a("s_waitcnt vmcnt(0)")
        b = C.V_ACC + tl * 16
        for src in list(range(3)) + ["x"]:
            for i in range(8):
                rr = (L + src * 8 + i) if src != "x" else X + i
                a(f"v_lshlrev_b32 v{t+2}, 16, v{rr}")
                a(f"v_and_b32 v{t+3}, 0xffff0000, v{rr}")
                a(f"v_add_f32 v{b+2*i}, v{b+2*i}, v{t+2}")
                a(f"v_add_f32 v{b+2*i+1}, v{b+2*i+1}, v{t+3}")
        for q in range(4):
            a(f"v_cvt_pk_bf16_f32 v{X+2*q}, v{b+4*q}, v{b+4*q+1}")
            a(f"v_cvt_pk_bf16_f32 v{X+2*q+1}, v{b+4*q+2}, v{b+4*q+3}")
            a(f"buffer_store_dwordx2 v[{X+2*q}:{X+2*q+1}], v{t+1}, s[64:67], s{36 + QOFF[q] // 16384} offen offset:{QOFF[q] % 16384}")
        if OPT.get("stamp"):
            a("s_waitcnt vmcnt(0)")
            stamp(a, 5)
            stamp_flush(a, "L_g2", t + 2)
        a("s_endpgm")
    a.label("L_g2_end")
    a("s_endpgm")
    return kernel_desc(name, X + 8)


def main():
    global ARGS
    ARGS = [x for x in sys.argv[1:] if "=" not in x]
    for x in sys.argv[1:]:
        if "=" in x:
            k, v = x.split("=")
            OPT[k] = int(v)
    hdr = open("cdna_kernels/" + NAME + ".s.ref").read().split("\n")
    top = [l for l in hdr if l.startswith(";") and "@launch" not in l and "Override" not in l and "grid=ceil" not in l]
    a = Asm()
    descs = []
    a.raw('.amdgcn_target "amdgcn-amd-amdhsa--gfx950"')
    a.raw(".text")
    descs.append(gen_prep(a))
    descs.append(gen_gemm1(a))
    descs.append(gen_gemm2(a))
    out = "\n".join(top) + "\n"
    out += f"; @launch kernel=prep_kernel grid=({PREP_WGS},1,1) block=(256,1,1) lds=0\n"
    out += f"; @launch kernel=gemm1_kernel grid=({G1_WGS},1,1) block=(512,1,1) lds={G1.LDS}\n"
    out += f"; @launch kernel=gemm2_kernel grid=({G2_WGS},1,1) block=(512,1,1) lds={G2.LDS}\n"
    if OPT.get("report"):
        out += f"; @launch kernel=report_kernel grid=(1,1,1) block=(64,1,1) lds=0\n"
        kernel_begin(a, "report_kernel")
        a(f"""
        s_cmp_ge_u32 s2, 1
        s_cbranch_scc1 L_rep_end
        s_load_dwordx4 s[4:7], s[0:1], {KA_DBG}
        s_waitcnt lgkmcnt(0)
        """)
        srd(a, 8, 4, 0, 256)
        srd(a, 12, 6, 59 << 20, 8 << 20)
        a("""
        v_lshlrev_b32 v1, 9, v0
        v_mov_b32 v2, 0
        buffer_load_dword v10, v2, s[12:15], 0 offen
        """)
        a(f"s_mov_b32 s16, {3 << 20}")
        a(f"s_mov_b32 s17, {4 << 20}")
        for k in range(5):
            a(f"buffer_load_dword v{11+k}, v1, s[12:15], s16 offen offset:{8*k}")
        for k in range(6):
            a(f"buffer_load_dword v{16+k}, v1, s[12:15], s17 offen offset:{8*k}")
        for k, task in enumerate((2040, 3450, 4860)):
            a(f"buffer_load_dword v{22+k}, v2, s[12:15], 0 offen offset:0") if False else None
            a(f"s_mov_b32 s18, {32768 + task*4}")
            a(f"buffer_load_dword v{22+k}, v2, s[12:15], s18 offen")
        for k, task in enumerate((2040, 4860)):
            a(f"s_mov_b32 s18, {task*4}")
            a(f"buffer_load_dword v{25+k}, v2, s[12:15], s18 offen")
        a("s_waitcnt vmcnt(0)")
        for k in range(16):
            a(f"v_sub_u32 v{11+k}, v{11+k}, v10")
        a("s_mov_b64 exec, 1")
        for k in range(16):
            a(f"buffer_store_dword v{11+k}, v2, s[8:11], 0 offen offset:{4*k}")
        a.label("L_rep_end")
        a("s_endpgm")
        descs.append(kernel_desc("report_kernel", 32))
    for i in range(OPT.get("dummy", 0)):
        out += f"; @launch kernel=dummy_kernel grid=(1,1,1) block=(64,1,1) lds=0\n"
    if OPT.get("dummy", 0):
        kernel_begin(a, "dummy_kernel")
        a("s_endpgm")
        descs.append(kernel_desc("dummy_kernel", 8))
    out += a.text()
    out += '.section .rodata,"a"\n'
    for d in descs:
        out += ".p2align 6\n" + d
    path = ARGS[0] if ARGS else "cdna_kernels/" + NAME + ".s"
    open(path, "w").write(out)


if __name__ == "__main__":
    main()
```

```python
import struct
import sys

NAME = "parallel_sum__spectral_fnet__geglu_ffn__prompt"
OPT = {}

WS_XN = 0
WS_WGU = 2 << 20
WS_B = 8 << 20
WS_H = 16 << 20
WS_PART = 32 << 20
WS_FLAG = 30 << 20
WS_SIZE = 268435456

KA_X, KA_WSRE, KA_WSIM, KA_WDRE, KA_WDIM, KA_BX, KA_WG, KA_WU, KA_WDN, KA_OUT, KA_DBG, KA_WS = [8 * i for i in range(12)]


def f32bits(x):
    return struct.unpack("<I", struct.pack("<f", x))[0]


class Asm:
    def __init__(self):
        self.lines = []

    def __call__(self, s):
        for ln in s.strip("\n").split("\n"):
            self.lines.append("    " + ln.strip())

    def label(self, s):
        self.lines.append(s + ":")

    def raw(self, s):
        self.lines.append(s)

    def text(self):
        return "\n".join(self.lines) + "\n"


def kernel_begin(a, name):
    a.raw(f".globl {name}")
    a.raw(".p2align 8")
    a.raw(f".type {name},@function")
    a.label(name)


def kernel_desc(name, vgpr, sgpr=96):
    acc = (vgpr + 3) // 4 * 4
    return f""".amdhsa_kernel {name}
  .amdhsa_next_free_vgpr {vgpr}
  .amdhsa_next_free_sgpr {sgpr}
  .amdhsa_accum_offset {acc}
  .amdhsa_group_segment_fixed_size 0
  .amdhsa_kernarg_size 96
  .amdhsa_user_sgpr_count 2
  .amdhsa_user_sgpr_kernarg_segment_ptr 1
  .amdhsa_system_sgpr_workgroup_id_x 1
  .amdhsa_float_denorm_mode_32 3
.end_amdhsa_kernel
"""


def srd(a, d, base, off, size):
    if off:
        a(f"s_add_u32 s{d}, s{base}, {off}")
        a(f"s_addc_u32 s{d+1}, s{base+1}, 0")
    else:
        a(f"s_mov_b32 s{d}, s{base}")
        a(f"s_mov_b32 s{d+1}, s{base+1}")
    a(f"s_mov_b32 s{d+2}, {size}")
    a(f"s_mov_b32 s{d+3}, 0x00020000")


N_LN = 2048
N_WGU = 22 * 64
N_WD = 8 * 176
N_PF = 0
PREP_WGS = 0


def gen_prep(a):
    global N_PF, PREP_WGS
    N_PF = 1024 if OPT.get("pf", 0) == 1 else 0
    PREP_WGS = (N_LN + N_WGU + N_WD + N_PF) // 4
    name = "prep_kernel"
    kernel_begin(a, name)
    PSTAMP = ""
    if OPT.get("stamp"):
        PSTAMP = f"""
    s_memrealtime s[40:41]
    s_add_u32 s44, s14, {59 << 20}
    s_addc_u32 s45, s15, 0
    s_mov_b32 s46, 65536
    s_mov_b32 s47, 0x00020000
    s_lshl_b32 s48, s16, 2
    s_add_u32 s49, s48, 32768
    s_waitcnt lgkmcnt(0)
    v_mov_b32 v30, s40
    v_mov_b32 v31, 0
    buffer_store_dword v30, v31, s[44:47], s48 offen
    """
    a(f"""
    s_cmp_ge_u32 s2, {PREP_WGS}
    s_cbranch_scc1 L_prep_end
    s_load_dwordx2 s[4:5], s[0:1], {KA_X}
    s_load_dwordx4 s[8:11], s[0:1], {KA_WG}
    s_load_dwordx2 s[12:13], s[0:1], {KA_WDN}
    s_load_dwordx2 s[14:15], s[0:1], {KA_WS}
    v_lshrrev_b32 v1, 6, v0
    v_and_b32 v2, 63, v0
    s_nop 0
    v_readfirstlane_b32 s3, v1
    s_lshl_b32 s16, s2, 2
    s_nop 3
    s_add_u32 s16, s16, s3
    s_waitcnt lgkmcnt(0)
    {PSTAMP}
    s_cmp_lt_u32 s16, {N_PF}
    s_cbranch_scc1 L_prep_pf
    s_sub_u32 s16, s16, {N_PF}
    s_cmp_ge_u32 s16, {N_LN}
    s_cbranch_scc1 L_prep_wgu
    """)
    srd(a, 20, 4, 0, 2048 * 1024)
    srd(a, 24, 14, WS_XN, 2048 * 1024)
    a("""
    s_lshl_b32 s17, s16, 10
    v_lshlrev_b32 v3, 4, v2
    buffer_load_dwordx4 v[4:7], v3, s[20:23], s17 offen
    s_cmp_lg_u32 s16, 0
    s_cbranch_scc1 L_prep_noflag
    """)
    srd(a, 28, 14, WS_FLAG, 16384)
    a("""
    v_mov_b32 v8, 0
    v_mov_b32 v9, 0
    v_mov_b32 v10, 0
    v_mov_b32 v11, 0
    s_mov_b32 s32, 0
    """)
    for i in range(16):
        a(f"buffer_store_dwordx4 v[8:11], v3, s[28:31], s32 offen")
        a("s_add_u32 s32, s32, 1024")
    a.label("L_prep_noflag")
    a("""
    v_lshlrev_b32 v30, 2, v2
    v_xor_b32 v31, 4, v30
    v_xor_b32 v32, 8, v30
    v_xor_b32 v33, 16, v30
    v_xor_b32 v34, 32, v30
    v_xor_b32 v35, 64, v30
    v_xor_b32 v36, 128, v30
    s_waitcnt vmcnt(0)
    """)
    for i in range(4):
        a(f"v_lshlrev_b32 v{8+2*i}, 16, v{4+i}")
        a(f"v_and_b32 v{9+2*i}, 0xffff0000, v{4+i}")
    a("""
    v_add_f32 v16, v8, v9
    v_add_f32 v17, v10, v11
    v_add_f32 v18, v12, v13
    v_add_f32 v19, v14, v15
    v_add_f32 v16, v16, v17
    v_add_f32 v18, v18, v19
    v_add_f32 v16, v16, v18
    """)
    for r in range(31, 37):
        a(f"""
        ds_bpermute_b32 v17, v{r}, v16
        s_waitcnt lgkmcnt(0)
        v_add_f32 v16, v16, v17
        """)
    a(f"v_mul_f32 v16, 0x{f32bits(1.0/512):08x}, v16")
    for i in range(8):
        a(f"v_sub_f32 v{20+i}, v{8+i}, v16")
    a("v_mul_f32 v17, v20, v20")
    for i in range(1, 8):
        a(f"v_fmac_f32 v17, v{20+i}, v{20+i}")
    for r in range(31, 37):
        a(f"""
        ds_bpermute_b32 v18, v{r}, v17
        s_waitcnt lgkmcnt(0)
        v_add_f32 v17, v17, v18
        """)
    a(f"""
    v_mul_f32 v17, 0x{f32bits(1.0/512):08x}, v17
    v_cvt_pk_bf16_f32 v18, v16, v17
    v_lshlrev_b32 v16, 16, v18
    v_and_b32 v17, 0xffff0000, v18
    v_add_f32 v17, 0x{f32bits(1e-5):08x}, v17
    v_cvt_pk_bf16_f32 v18, v17, v17
    v_lshlrev_b32 v17, 16, v18
    v_sqrt_f32 v17, v17
    s_nop 0
    v_cvt_pk_bf16_f32 v18, v17, v17
    v_lshlrev_b32 v17, 16, v18
    v_rcp_f32 v19, v17
    """)
    for i in range(8):
        a(f"v_sub_f32 v{20+i}, v{8+i}, v16")
    for i in range(4):
        a(f"v_cvt_pk_bf16_f32 v{4+i}, v{20+2*i}, v{21+2*i}")
    for i in range(4):
        a(f"v_lshlrev_b32 v{8+2*i}, 16, v{4+i}")
        a(f"v_and_b32 v{9+2*i}, 0xffff0000, v{4+i}")
    for i in range(8):
        a(f"v_mul_f32 v{20+i}, v{8+i}, v19")
    for i in range(8):
        a(f"v_fma_f32 v{8+i}, -v{20+i}, v17, v{8+i}")
    for i in range(8):
        a(f"v_fmac_f32 v{20+i}, v{8+i}, v19")
    for i in range(4):
        a(f"v_cvt_pk_bf16_f32 v{4+i}, v{20+2*i}, v{21+2*i}")
    a("""
    buffer_store_dwordx4 v[4:7], v3, s[24:27], s17 offen
    """)
    if OPT.get("stamp"):
        a("""
        s_waitcnt vmcnt(0)
        s_memrealtime s[40:41]
        s_waitcnt lgkmcnt(0)
        v_mov_b32 v30, s40
        v_mov_b32 v31, 0
        buffer_store_dword v30, v31, s[44:47], s49 offen
        """)
    a("s_endpgm")
    a.label("L_prep_wgu")
    a(f"""
    s_cmp_ge_u32 s16, {N_LN + N_WGU}
    s_cbranch_scc1 L_prep_wd
    s_sub_u32 s16, s16, {N_LN}
    s_lshr_b32 s17, s16, 6
    s_and_b32 s18, s16, 63
    """)
    srd(a, 20, 8, 0, 512 * 2752)
    srd(a, 24, 10, 0, 512 * 2752)
    srd(a, 28, 14, WS_WGU, 2816 * 1024)
    a("""
    s_lshl_b32 s19, s17, 6
    v_add_u32 v3, s19, v2
    v_lshlrev_b32 v4, 1, v3
    s_mul_i32 s32, s18, 22016
    """)
    for j in range(8):
        a(f"buffer_load_ushort v{16+j}, v4, s[20:23], s32 offen")
        a(f"buffer_load_ushort v{24+j}, v4, s[24:27], s32 offen")
        if j < 7:
            a("s_add_u32 s32, s32, 2752")
    a("""
    v_lshrrev_b32 v5, 5, v3
    v_lshlrev_b32 v5, 6, v5
    v_and_b32 v6, 31, v3
    v_add_u32 v5, v5, v6
    v_lshlrev_b32 v5, 10, v5
    s_lshl_b32 s33, s18, 4
    v_mov_b32 v7, 1376
    v_cmp_gt_u32 vcc, v7, v3
    s_waitcnt vmcnt(0)
    """)
    for j in range(8):
        a(f"v_lshl_or_b32 v{8+j}, v{17+2*j}, 16, v{16+2*j}")
    for j in range(8):
        a(f"v_cndmask_b32 v{8+j}, 0, v{8+j}, vcc")
    a("""
    buffer_store_dwordx4 v[8:11], v5, s[28:31], s33 offen
    s_add_u32 s33, s33, 32768
    buffer_store_dwordx4 v[12:15], v5, s[28:31], s33 offen
    """)
    if OPT.get("stamp"):
        a("""
        s_waitcnt vmcnt(0)
        s_memrealtime s[40:41]
        s_waitcnt lgkmcnt(0)
        v_mov_b32 v30, s40
        v_mov_b32 v31, 0
        buffer_store_dword v30, v31, s[44:47], s49 offen
        """)
    a("s_endpgm")
    a.label("L_prep_wd")
    a(f"""
    s_sub_u32 s16, s16, {N_LN + N_WGU}
    s_mul_hi_u32 s17, s16, {((1 << 32) + 175) // 176}
    s_mul_i32 s18, s17, 176
    s_sub_u32 s18, s16, s18
    """)
    srd(a, 20, 12, 0, 1376 * 1024)
    srd(a, 28, 14, WS_B + (4 << 20), 512 * 4096)
    a("""
    s_lshl_b32 s19, s17, 6
    v_add_u32 v3, s19, v2
    v_lshlrev_b32 v4, 1, v3
    s_lshl_b32 s32, s18, 13
    """)
    for j in range(8):
        a(f"buffer_load_ushort v{16+j}, v4, s[20:23], s32 offen")
        if j < 7:
            a("s_add_u32 s32, s32, 1024")
    a("""
    v_lshlrev_b32 v5, 12, v3
    s_lshl_b32 s33, s18, 4
    s_waitcnt vmcnt(0)
    """)
    for j in range(4):
        a(f"v_lshl_or_b32 v{8+j}, v{17+2*j}, 16, v{16+2*j}")
    a("""
    buffer_store_dwordx4 v[8:11], v5, s[28:31], s33 offen
    """)
    if OPT.get("stamp"):
        a("""
        s_waitcnt vmcnt(0)
        s_memrealtime s[40:41]
        s_waitcnt lgkmcnt(0)
        v_mov_b32 v30, s40
        v_mov_b32 v31, 0
        buffer_store_dword v30, v31, s[44:47], s49 offen
        """)
    a("s_endpgm")
    a.label("L_prep_pf")
    a(f"""
    s_load_dwordx4 s[20:23], s[0:1], {KA_WSRE}
    s_lshl_b32 s17, s16, 13
    v_lshlrev_b32 v3, 4, v2
    s_waitcnt lgkmcnt(0)
    """)
    srd(a, 24, 20, 0, 2048 * 4096)
    srd(a, 28, 22, 0, 2048 * 4096)
    for i in range(8):
        a(f"buffer_load_dwordx4 v[{4+4*(i%4)}:{7+4*(i%4)}], v3, s[24:27], s17 offen")
        a(f"buffer_load_dwordx4 v[{20+4*(i%4)}:{23+4*(i%4)}], v3, s[28:31], s17 offen")
        a("s_add_u32 s17, s17, 1024")
    a.label("L_prep_end")
    a("s_endpgm")
    return kernel_desc(name, 40)


S_SRDP = 4
S_SRDQ = 8
S_OFFP = 12
S_OFFQ = 13
S_WOFF = 14
S_N = 15
S_NEND = 16
S_JL = 17
S_JEND = 18
S_WAVE = 19
S_WOFFQ = 39


def stamp(a, k):
    if OPT.get("stamp"):
        a(f"s_memrealtime s[{74+2*k}:{75+2*k}]")


def stamp_flush(a, pfx, T, n=8):
    if OPT.get("stamp"):
        a("s_waitcnt lgkmcnt(0)")
        srd(a, 68, 44, (62 << 20) + (0 if pfx == "L_g1" else (1 << 20)), 1 << 20)
        a(f"""
        s_lshl_b32 s72, s2, 3
        s_add_u32 s72, s72, s{S_WAVE}
        s_lshl_b32 s72, s72, 6
        v_mov_b32 v{T}, 0
        """)
        for i in range(2 * n):
            a(f"v_mov_b32 v{T+1}, s{74+i}")
            a(f"buffer_store_dword v{T+1}, v{T}, s[68:71], s72 offen offset:{4*i}")


class Core:
    def __init__(self, MT, NS):
        self.MT, self.NS = MT, NS
        self.BM = 64 * MT
        self.PSZ = self.BM * 128
        self.QSZ = 16384
        self.QBASE = NS * self.PSZ
        self.LDS = self.QBASE + NS * self.QSZ
        self.NPI = self.BM // 32
        self.NDMA = self.NPI + 4
        self.V_LDP = 4
        self.V_LDQ = 12
        self.M16 = bool(OPT.get("m16", 0))
        self.V_FA = 4
        if self.M16:
            self.PA = 4
            self.PB = self.PA + MT * 4
            self.QA = self.PB + MT * 4
            self.QB = self.QA + 16
            self.V_ACC = self.QB + 16
            nkk, fr = 2, 2048
            nP, nQ = 2 * MT, 4
        else:
            self.FS = (MT + 2) * 4
            self.V_FB = self.V_FA + self.FS
            self.V_ACC = self.V_FB + self.FS
            nkk, fr = 4, 4096
            nP, nQ = MT, 2
        self.V_RD = self.V_ACC + MT * 32
        self.rd = {}
        n = 0
        for op, base, ssz, nt in (("P", 0, self.PSZ, nP), ("Q", self.QBASE, self.QSZ, nQ)):
            wins = sorted({(base + st * ssz + t * fr) >> 16 for st in range(NS) for t in range(nt)})
            for w in wins:
                for kk in range(nkk):
                    self.rd[(op, kk, w)] = self.V_RD + n
                    n += 1
        self.V_TMP = (self.V_RD + n + 1) // 2 * 2
        self.LN_MASK = 15 if self.M16 else 31
        self.LM_SHIFT = 4 if self.M16 else 5

    def acc(self, mt, nt):
        return self.V_ACC + (mt * 2 + nt) * 16

    def accs(self, mt, nt):
        b = self.acc(mt, nt)
        return f"v[{b}:{b+15}]"

    def acc16(self, mi, ni):
        return self.V_ACC + ((mi >> 1) * 2 + (ni >> 1)) * 16 + ((mi & 1) * 2 + (ni & 1)) * 4

    def quads(self):
        out = []
        if self.M16:
            for mi in range(2 * self.MT):
                for ni in range(4):
                    out.append((self.acc16(mi, ni), mi * 16, ni * 16))
        else:
            for mt in range(self.MT):
                for nt in range(2):
                    for q in range(4):
                        out.append((self.acc(mt, nt) + 4 * q, mt * 32 + 8 * q, nt * 32))
        return out

    def setup_loader(self, a, rowP_s, rowQ_s, strideP, strideQ):
        t = 20
        rq = self.BM // 4
        a(f"""
        s_sub_u32 s{S_WOFF}, s{S_WAVE}, 4
        s_lshl_b32 s{S_WOFFQ}, s{S_WOFF}, 12
        s_mul_i32 s30, s{S_WOFF}, {rq}
        s_lshl_b32 s31, s{S_WOFF}, 5
        s_mul_i32 s{S_WOFF}, s{S_WOFF}, {rq*128}
        v_lshrrev_b32 v{t}, 3, v1
        v_and_b32 v{t+2}, 7, v1
        v_lshrrev_b32 v{t+3}, 4, v1
        v_xor_b32 v{t+2}, v{t+2}, v{t+3}
        """)
        for (vld, row_s, stride, n, sw) in ((self.V_LDP, rowP_s, strideP, self.NPI, 30), (self.V_LDQ, rowQ_s, strideQ, 4, 31)):
            sh = stride.bit_length() - 1
            assert 1 << sh == stride
            for i in range(n):
                a(f"v_add_u32 v{t+4}, s{row_s}, v{t}")
                a(f"v_add_u32 v{t+4}, s{sw}, v{t+4}")
                if i:
                    a(f"v_add_u32 v{t+4}, {8*i}, v{t+4}")
                a(f"v_lshlrev_b32 v{t+4}, {sh}, v{t+4}")
                if i & 1:
                    a(f"v_xor_b32 v{t+5}, 4, v{t+2}")
                else:
                    a(f"v_mov_b32 v{t+5}, v{t+2}")
                a(f"v_lshlrev_b32 v{t+5}, 4, v{t+5}")
                a(f"v_add_u32 v{vld+i}, v{t+4}, v{t+5}")
                if i & 3:
                    a(f"v_subrev_u32 v{vld+i}, {1024*(i&3)}, v{vld+i}")

    def setup_compute(self, a):
        t = self.V_TMP
        if self.M16:
            a(f"""
            v_and_b32 v{t}, 15, v1
            v_lshrrev_b32 v{t+1}, 4, v1
            v_lshrrev_b32 v{t+2}, 1, v{t}
            v_xor_b32 v{t+2}, v{t+2}, v{t+1}
            """)
        else:
            a(f"""
            v_and_b32 v{t}, 31, v1
            v_lshrrev_b32 v{t+1}, 5, v1
            v_lshrrev_b32 v{t+2}, 1, v1
            v_and_b32 v{t+2}, 7, v{t+2}
            v_xor_b32 v{t+2}, v{t+2}, v{t+1}
            """)
        a(f"""
        v_lshrrev_b32 v{t+3}, 1, v2
        v_mul_u32_u24 v{t+3}, {self.MT*32}, v{t+3}
        v_add_u32 v{t+3}, v{t+3}, v{t}
        v_lshlrev_b32 v{t+3}, 7, v{t+3}
        v_and_b32 v{t+4}, 1, v2
        v_lshlrev_b32 v{t+4}, 6, v{t+4}
        v_add_u32 v{t+4}, v{t+4}, v{t}
        v_lshlrev_b32 v{t+4}, 7, v{t+4}
        """)
        for (op, kk, w), r in self.rd.items():
            a(f"v_xor_b32 v{t+5}, {(4 if self.M16 else 2)*kk}, v{t+2}")
            a(f"v_lshlrev_b32 v{t+5}, 4, v{t+5}")
            a(f"v_add_u32 v{r}, v{t+3 if op == 'P' else t+4}, v{t+5}")
            if w:
                a(f"v_add_u32 v{r}, {w << 16}, v{r}")
        for i in range(self.MT * 32):
            a(f"v_mov_b32 v{self.V_ACC+i}, 0")

    def rdP16(self, a, dst, stage, kk, mh):
        for j in range(self.MT):
            off = stage * self.PSZ + (mh * self.MT + j) * 2048
            a(f"ds_read_b128 v[{dst+4*j}:{dst+4*j+3}], v{self.rd[('P', kk, off >> 16)]} offset:{off & 0xffff}")

    def rdQ16(self, a, dst, stage, kk):
        for j in range(4):
            off = self.QBASE + stage * self.QSZ + j * 2048
            a(f"ds_read_b128 v[{dst+4*j}:{dst+4*j+3}], v{self.rd[('Q', kk, off >> 16)]} offset:{off & 0xffff}")

    def mfma16(self, a, P, Q, mh):
        for j in range(self.MT):
            for ni in range(4):
                r = self.acc16(mh * self.MT + j, ni)
                a(f"v_mfma_f32_16x16x32_bf16 v[{r}:{r+3}], v[{P+4*j}:{P+4*j+3}], v[{Q+4*ni}:{Q+4*ni+3}], v[{r}:{r+3}]")

    def dma(self, a, stage):
        for i in range(self.NPI):
            if i % 4 == 0:
                a(f"s_add_u32 m0, s{S_WOFF}, {stage*self.PSZ + i*1024}")
                a("s_nop 0")
            a(f"buffer_load_dwordx4 v{self.V_LDP+i}, s[{S_SRDP}:{S_SRDP+3}], s{S_OFFP} offen offset:{1024*(i&3)} lds")
        a(f"s_add_u32 m0, s{S_WOFFQ}, {self.QBASE + stage*self.QSZ}")
        a("s_nop 0")
        for i in range(4):
            a(f"buffer_load_dwordx4 v{self.V_LDQ+i}, s[{S_SRDQ}:{S_SRDQ+3}], s{S_OFFQ} offen offset:{1024*i} lds")

    def reads(self, a, fset, stage, kk):
        for mt in range(self.MT):
            off = stage * self.PSZ + mt * 4096
            a(f"ds_read_b128 v[{fset+4*mt}:{fset+4*mt+3}], v{self.rd[('P', kk, off >> 16)]} offset:{off & 0xffff}")
        for nt in range(2):
            off = self.QBASE + stage * self.QSZ + nt * 4096
            qb = fset + 4 * self.MT + 4 * nt
            a(f"ds_read_b128 v[{qb}:{qb+3}], v{self.rd[('Q', kk, off >> 16)]} offset:{off & 0xffff}")

    def mfma(self, a, fset):
        for mt in range(self.MT):
            for nt in range(2):
                qb = fset + 4 * self.MT + 4 * nt
                if not OPT.get("nomfma"):
                    a(f"v_mfma_f32_32x32x16_bf16 {self.accs(mt,nt)}, v[{fset+4*mt}:{fset+4*mt+3}], v[{qb}:{qb+3}], {self.accs(mt,nt)}")

    def body(self, a, pfx, step_setup, rowP_s, rowQ_s, strideP, strideQ, tail=None, pre=None, filler=None):
        NS = self.NS
        nr = self.MT + 2
        a(f"""
        v_and_b32 v1, 63, v0
        v_lshrrev_b32 v2, 6, v0
        s_nop 0
        v_readfirstlane_b32 s{S_WAVE}, v2
        s_nop 3
        s_mov_b32 s{S_N}, 0
        s_cmp_lt_u32 s{S_WAVE}, 4
        s_cbranch_scc1 {pfx}_compute
        """)

        self.setup_loader(a, rowP_s, rowQ_s, strideP, strideQ)
        for st in range(NS - 1):
            step_setup(a)
            self.dma(a, st)
        a(f"""
        s_waitcnt vmcnt({(NS-2)*self.NDMA})
        s_barrier
        """)
        a.label(f"{pfx}_lloop")
        for u in range(NS):
            a(f"s_cmp_ge_u32 s{S_JL}, s{S_JEND}")
            a(f"s_cbranch_scc1 {pfx}_lskip{u}")
            step_setup(a)
            self.dma(a, (u + NS - 1) % NS)
            a(f"s_waitcnt vmcnt({(NS-2)*self.NDMA})")
            a(f"s_branch {pfx}_lbar{u}")
            a.label(f"{pfx}_lskip{u}")
            a("s_waitcnt vmcnt(0)")
            a.label(f"{pfx}_lbar{u}")
            a("s_barrier")
            a(f"s_add_u32 s{S_N}, s{S_N}, 1")
            a(f"s_cmp_ge_u32 s{S_N}, s{S_NEND}")
            if u < NS - 1:
                a(f"s_cbranch_scc1 {pfx}_ldone")
            else:
                a(f"s_cbranch_scc0 {pfx}_lloop")
        a.label(f"{pfx}_ldone")
        a("s_endpgm")
        a.label(f"{pfx}_compute")
        self.setup_compute(a)
        if pre:
            pre(a)
        a("s_barrier")
        if OPT.get("stamp"):
            a("s_memtime s[60:61]")
            a("s_memrealtime s[62:63]")
            a("s_memrealtime s[76:77]")
            a("s_waitcnt lgkmcnt(0)")
        MT = self.MT
        if self.M16:
            self.rdP16(a, self.PA, 0, 0, 0)
            self.rdQ16(a, self.QA, 0, 0)
        else:
            self.reads(a, self.V_FA, 0, 0)
        a.label(f"{pfx}_loop")
        for u in range(NS):
            if self.M16:
                self.rdP16(a, self.PB, u, 0, 1)
                a(f"s_waitcnt lgkmcnt({MT})")
                self.mfma16(a, self.PA, self.QA, 0)
                if filler:
                    filler(a)
                self.rdP16(a, self.PA, u, 1, 0)
                self.rdQ16(a, self.QB, u, 1)
                a(f"s_waitcnt lgkmcnt({MT+4})")
                self.mfma16(a, self.PB, self.QA, 1)
                self.rdP16(a, self.PB, u, 1, 1)
                a(f"s_waitcnt lgkmcnt({MT})")
                self.mfma16(a, self.PA, self.QB, 0)
                if filler:
                    filler(a)
                a("s_waitcnt lgkmcnt(0)")
                a("s_barrier")
                self.rdP16(a, self.PA, (u + 1) % NS, 0, 0)
                self.rdQ16(a, self.QA, (u + 1) % NS, 0)
                self.mfma16(a, self.PB, self.QB, 1)
            else:
                self.reads(a, self.V_FB, u, 1)
                a(f"s_waitcnt lgkmcnt({nr})")
                self.mfma(a, self.V_FA)
                if filler:
                    filler(a)
                self.reads(a, self.V_FA, u, 2)
                a(f"s_waitcnt lgkmcnt({nr})")
                self.mfma(a, self.V_FB)
                self.reads(a, self.V_FB, u, 3)
                a(f"s_waitcnt lgkmcnt({nr})")
                self.mfma(a, self.V_FA)
                if filler:
                    filler(a)
                a("s_waitcnt lgkmcnt(0)")
                a("s_barrier")
                self.reads(a, self.V_FA, (u + 1) % NS, 0)
                self.mfma(a, self.V_FB)
            a(f"s_add_u32 s{S_N}, s{S_N}, 1")
            a(f"s_cmp_ge_u32 s{S_N}, s{S_NEND}")
            if u < NS - 1:
                a(f"s_cbranch_scc1 {pfx}_done")
            else:
                a(f"s_cbranch_scc0 {pfx}_loop")
        a.label(f"{pfx}_done")
        a("s_waitcnt lgkmcnt(0)")
        a("s_nop 15")
        if OPT.get("stamp"):
            T = self.V_TMP
            a("s_memtime s[64:65]")
            a("s_memrealtime s[66:67]")
            a("s_memrealtime s[78:79]")
            a("s_waitcnt lgkmcnt(0)")
            srd(a, 68, 44, (60 << 20) + (0 if pfx == "L_g1" else (1 << 20)), 1 << 20)
            a(f"""
            s_lshl_b32 s72, s2, 3
            s_add_u32 s72, s72, s{S_WAVE}
            s_lshl_b32 s72, s72, 5
            v_mov_b32 v{T}, 0
            """)
            for i in range(8):
                a(f"v_mov_b32 v{T+1}, s{60+i}")
                a(f"buffer_store_dword v{T+1}, v{T}, s[68:71], s72 offen offset:{4*i}")


G1 = None
G1_WGS = 240


def gen_gemm1(a):
    global G1
    C = G1 = Core(4, 3)
    name = "gemm1_kernel"
    kernel_begin(a, name)
    a(f"""
    s_cmp_ge_u32 s2, {G1_WGS}
    s_cbranch_scc1 L_g1_end
    {"s_memrealtime s[74:75]" if OPT.get("stamp") else ""}
    s_cmp_ge_u32 s2, 240
    s_cbranch_scc1 L_g1_pf
    s_load_dwordx4 s[40:43], s[0:1], {KA_WDRE}
    s_load_dwordx2 s[44:45], s[0:1], {KA_WS}
    s_waitcnt lgkmcnt(0)
    s_cmp_ge_u32 s2, 64
    s_cbranch_scc1 L_g1_ffn
    """)
    srd(a, S_SRDP, 44, WS_XN, 2048 * 1024)
    a("""
    s_lshr_b32 s21, s2, 3
    s_and_b32 s24, s2, 7
    s_lshl_b32 s24, s24, 8
    s_cmp_ge_u32 s21, 4
    s_cselect_b64 s[46:47], s[42:43], s[40:41]
    s_and_b32 s25, s21, 3
    s_lshl_b32 s25, s25, 7
    """)
    srd(a, S_SRDQ, 46, 0, 512 * 1024)
    a("s_branch L_g1_main")
    a.label("L_g1_ffn")
    srd(a, S_SRDP, 44, WS_WGU, 2816 * 1024)
    srd(a, S_SRDQ, 44, WS_XN, 2048 * 1024)
    a("""
    s_sub_u32 s23, s2, 64
    s_and_b32 s25, s23, 15
    s_lshl_b32 s25, s25, 7
    s_lshr_b32 s24, s23, 4
    s_lshl_b32 s24, s24, 8
    s_mov_b32 s21, 8
    """)
    a.label("L_g1_main")
    a(f"""
    s_mov_b32 s26, s{S_SRDP+2}
    s_mov_b32 s27, s{S_SRDQ+2}
    s_mov_b32 s{S_JL}, 0
    s_mov_b32 s{S_JEND}, 8
    s_mov_b32 s{S_NEND}, 8
    """)

    def step_setup(a):
        a(f"""
        s_lshl_b32 s{S_OFFP}, s{S_JL}, 7
        s_mov_b32 s{S_OFFQ}, s{S_OFFP}
        s_cmp_lt_u32 s{S_JL}, s{S_JEND}
        s_cselect_b32 s{S_SRDP+2}, s26, 0
        s_cselect_b32 s{S_SRDQ+2}, s27, 0
        s_add_u32 s{S_JL}, s{S_JL}, 1
        """)

    PFV = C.V_TMP + 12

    def pre(a):
        a(f"""
        s_load_dwordx4 s[48:51], s[0:1], {KA_WSRE}
        s_lshl_b32 s38, s2, 2
        s_add_u32 s38, s38, s{S_WAVE}
        s_lshl_b32 s38, s38, 10
        v_lshlrev_b32 v{PFV+8}, 4, v1
        s_waitcnt lgkmcnt(0)
        """)
        srd(a, 52, 48, 0, 2048 * 4096)
        srd(a, 56, 50, 0, 2048 * 4096)

    def filler(a):
        a(f"buffer_load_dwordx4 v[{PFV}:{PFV+3}], v{PFV+8}, s[52:55], s38 offen")
        a(f"buffer_load_dwordx4 v[{PFV+4}:{PFV+7}], v{PFV+8}, s[56:59], s38 offen")
        a(f"s_add_u32 s38, s38, {960*1024}")

    if OPT.get("pf", 0) == 2:
        C.body(a, "L_g1", step_setup, 24, 25, 1024, 1024, None, pre, filler)
    else:
        C.body(a, "L_g1", step_setup, 24, 25, 1024, 1024)
    t = C.V_TMP
    a(f"""
    v_and_b32 v{t}, {C.LN_MASK}, v1
    v_lshrrev_b32 v{t+1}, {C.LM_SHIFT}, v1
    s_lshr_b32 s28, s{S_WAVE}, 1
    s_and_b32 s29, s{S_WAVE}, 1
    s_cmp_ge_u32 s21, 8
    s_cbranch_scc1 L_g1_epi_ffn
    """)
    RS = 272
    a(f"""
    s_lshr_b32 s30, s21, 2
    s_lshl_b32 s30, s30, 21
    s_add_u32 s30, s30, {WS_B}
    s_add_u32 s32, s44, s30
    s_addc_u32 s33, s45, 0
    s_mov_b32 s34, {512*4096}
    s_mov_b32 s35, 0x00020000
    s_mul_i32 s36, s{S_WAVE}, {64*RS}
    v_mul_u32_u24 v{t+2}, {RS}, v{t}
    v_lshlrev_b32 v{t+3}, 3, v{t+1}
    v_add3_u32 v{t+2}, v{t+2}, v{t+3}, s36
    s_cmp_ge_u32 s21, 4
    s_cselect_b32 s31, 0x80008000, 0
    s_barrier
    """)
    k = 0
    for (b, moff, noff) in C.quads():
        r = t + 4 + 2 * (k % 4)
        k += 1
        a(f"v_cvt_pk_bf16_f32 v{r}, v{b}, v{b+1}")
        a(f"v_cvt_pk_bf16_f32 v{r+1}, v{b+2}, v{b+3}")
        a(f"v_xor_b32 v{r}, s31, v{r}")
        a(f"v_xor_b32 v{r+1}, s31, v{r+1}")
        a(f"ds_write_b64 v{t+2}, v[{r}:{r+1}] offset:{noff*RS + moff*2}")
    a(f"""
    v_lshrrev_b32 v{t+3}, 4, v1
    v_and_b32 v{t+4}, 15, v1
    v_lshlrev_b32 v{t+4}, 4, v{t+4}
    v_mul_u32_u24 v{t+5}, {RS}, v{t+3}
    v_add3_u32 v{t+5}, v{t+5}, v{t+4}, s36
    v_lshlrev_b32 v{t+3}, 12, v{t+3}
    v_add_u32 v{t+3}, v{t+3}, v{t+4}
    s_lshl_b32 s30, s29, 6
    s_add_u32 s30, s30, s25
    s_lshl_b32 s30, s30, 12
    s_lshl_b32 s37, s28, 7
    s_add_u32 s37, s37, s24
    s_lshl_b32 s37, s37, 1
    s_add_u32 s30, s30, s37
    s_waitcnt lgkmcnt(0)
    """)
    for i in range(16):
        a(f"ds_read_b128 v[{C.V_ACC+4*i}:{C.V_ACC+4*i+3}], v{t+5} offset:{i*4*RS}")
    for i in range(16):
        a(f"s_waitcnt lgkmcnt({15-i})")
        a(f"buffer_store_dwordx4 v[{C.V_ACC+4*i}:{C.V_ACC+4*i+3}], v{t+3}, s[32:35], s30 offen")
        a("s_add_u32 s30, s30, 0x4000")
    if OPT.get("stamp"):
        stamp(a, 3)
        a("s_waitcnt vmcnt(0)")
        stamp(a, 4)
        stamp_flush(a, "L_g1", t + 4)
    a("s_endpgm")
    a.label("L_g1_epi_ffn")
    srd(a, 32, 44, WS_H, 2048 * 4096)
    c0 = -2.0 * 0.7978845608028654 * 1.4426950408889634
    c1 = c0 * 0.044715
    RS2 = 144
    a(f"""
    s_mul_i32 s36, s{S_WAVE}, {64*RS2}
    v_mul_u32_u24 v{t+2}, {RS2}, v{t}
    v_lshlrev_b32 v{t+3}, 3, v{t+1}
    v_add3_u32 v{t+2}, v{t+2}, v{t+3}, s36
    v_mov_b32 v{t+4}, 0x{f32bits(c0):08x}
    v_mov_b32 v{t+5}, 0x{f32bits(c0):08x}
    v_mov_b32 v{t+10}, 0x{f32bits(c1):08x}
    v_mov_b32 v{t+11}, 0x{f32bits(c1):08x}
    s_barrier
    """)
    k = 0
    qd = {(m, n): r for (r, m, n) in C.quads()}
    for (G0, moff, noff) in C.quads():
        if moff % 64 >= 32:
            continue
        U0 = qd[(moff + 32, noff)]
        foff = (moff // 64) * 32 + moff % 64
        for _once in range(1):
            for _once2 in range(1):
                g = 4 + 8 * (k % 2)
                o = t + 6 + 2 * (k % 2)
                k += 1
                for p in range(2):
                    a(f"v_pk_mul_f32 v[{g+2*p}:{g+2*p+1}], v[{G0+2*p}:{G0+2*p+1}], v[{G0+2*p}:{G0+2*p+1}]")
                for p in range(2):
                    a(f"v_pk_fma_f32 v[{g+2*p}:{g+2*p+1}], v[{g+2*p}:{g+2*p+1}], v[{t+10}:{t+11}], v[{t+4}:{t+5}]")
                for p in range(2):
                    a(f"v_pk_mul_f32 v[{g+2*p}:{g+2*p+1}], v[{g+2*p}:{g+2*p+1}], v[{G0+2*p}:{G0+2*p+1}]")
                for r in range(4):
                    a(f"v_exp_f32 v{g+r}, v{g+r}")
                for p in range(2):
                    a(f"v_pk_mul_f32 v[{g+4+2*p}:{g+4+2*p+1}], v[{G0+2*p}:{G0+2*p+1}], v[{U0+2*p}:{U0+2*p+1}]")
                for p in range(2):
                    a(f"v_pk_add_f32 v[{g+2*p}:{g+2*p+1}], v[{g+2*p}:{g+2*p+1}], 1.0 op_sel_hi:[1,0]")
                for r in range(4):
                    a(f"v_rcp_f32 v{g+r}, v{g+r}")
                a("s_nop 0")
                for p in range(2):
                    a(f"v_pk_mul_f32 v[{g+2*p}:{g+2*p+1}], v[{g+2*p}:{g+2*p+1}], v[{g+4+2*p}:{g+4+2*p+1}]")
                a(f"v_cvt_pk_bf16_f32 v{o}, v{g}, v{g+1}")
                a(f"v_cvt_pk_bf16_f32 v{o+1}, v{g+2}, v{g+3}")
                a(f"ds_write_b64 v{t+2}, v[{o}:{o+1}] offset:{noff*RS2 + foff*2}")
    a(f"""
    v_lshrrev_b32 v{t+3}, 3, v1
    v_and_b32 v{t+4}, 7, v1
    v_lshlrev_b32 v{t+4}, 4, v{t+4}
    v_mul_u32_u24 v{t+5}, {RS2}, v{t+3}
    v_add3_u32 v{t+5}, v{t+5}, v{t+4}, s36
    v_lshlrev_b32 v{t+3}, 12, v{t+3}
    v_add_u32 v{t+3}, v{t+3}, v{t+4}
    s_lshl_b32 s30, s29, 6
    s_add_u32 s30, s30, s25
    s_lshl_b32 s30, s30, 12
    s_lshl_b32 s37, s28, 7
    s_add_u32 s37, s37, s24
    s_add_u32 s30, s30, s37
    s_waitcnt lgkmcnt(0)
    """)
    for i in range(8):
        a(f"ds_read_b128 v[{C.V_ACC+4*i}:{C.V_ACC+4*i+3}], v{t+5} offset:{i*8*RS2}")
    for i in range(8):
        a(f"s_waitcnt lgkmcnt({7-i})")
        a(f"buffer_store_dwordx4 v[{C.V_ACC+4*i}:{C.V_ACC+4*i+3}], v{t+3}, s[32:35], s30 offen")
        a("s_add_u32 s30, s30, 0x8000")
    if OPT.get("stamp"):
        stamp(a, 3)
        a("s_waitcnt vmcnt(0)")
        stamp(a, 4)
        stamp_flush(a, "L_g1", t + 6)
    a("s_endpgm")
    a.label("L_g1_pf")
    a(f"""
    s_load_dwordx4 s[48:51], s[0:1], {KA_WSRE}
    v_and_b32 v1, 63, v0
    v_lshrrev_b32 v2, 6, v0
    s_nop 0
    v_readfirstlane_b32 s3, v2
    s_sub_u32 s38, s2, 240
    s_lshl_b32 s38, s38, 3
    s_nop 2
    s_add_u32 s38, s38, s3
    s_lshl_b32 s38, s38, 16
    v_lshlrev_b32 v3, 4, v1
    s_mov_b32 s39, 0
    s_waitcnt lgkmcnt(0)
    """)
    srd(a, 52, 48, 0, 2048 * 4096)
    srd(a, 56, 50, 0, 2048 * 4096)
    a.label("L_g1_pfl")
    for i in range(4):
        a(f"buffer_load_dwordx4 v[{4+8*i}:{7+8*i}], v3, s[52:55], s38 offen offset:{1024*i}")
        a(f"buffer_load_dwordx4 v[{8+8*i}:{11+8*i}], v3, s[56:59], s38 offen offset:{1024*i}")
    a("""
    s_add_u32 s38, s38, 4096
    s_add_u32 s39, s39, 1
    s_cmp_lt_u32 s39, 16
    s_cbranch_scc1 L_g1_pfl
    """)
    a.label("L_g1_end")
    a("s_endpgm")
    return kernel_desc(name, C.V_TMP + 24)


G2 = None
G2_WGS = 256


def gen_gemm2(a):
    global G2
    MT = OPT.get("g2mt", 2)
    SP = 2 * MT
    LSP = SP.bit_length() - 1
    C = G2 = Core(MT, 4 if MT == 2 else 3)
    name = "gemm2_kernel"
    kernel_begin(a, name)
    if MT == 2:
        MAP = """
        s_and_b32 s23, s2, 3
        s_lshr_b32 s20, s2, 2
        s_and_b32 s20, s20, 1
        s_lshl_b32 s20, s20, 3
        s_lshr_b32 s21, s2, 3
        s_and_b32 s22, s21, 7
        s_add_u32 s20, s20, s22
        s_lshr_b32 s22, s21, 3
        s_lshl_b32 s28, s20, 2
        s_add_u32 s28, s28, s22
        """
    else:
        MAP = """
        s_and_b32 s23, s2, 7
        s_lshr_b32 s21, s2, 3
        s_and_b32 s20, s21, 15
        s_lshr_b32 s22, s21, 4
        s_mov_b32 s28, s21
        """
    a(f"""
    s_cmp_ge_u32 s2, {G2_WGS}
    s_cbranch_scc1 L_g2_end
    {"s_memrealtime s[74:75]" if OPT.get("stamp") else ""}
    s_load_dwordx4 s[40:43], s[0:1], {KA_WSRE}
    s_load_dwordx2 s[44:45], s[0:1], {KA_WS}
    s_load_dwordx2 s[48:49], s[0:1], {KA_X}
    s_load_dwordx4 s[52:55], s[0:1], {KA_OUT}
    {MAP}
    s_mul_i32 s{S_JL}, s23, 86
    s_add_u32 s{S_JEND}, s{S_JL}, 86
    s_lshr_b32 s{S_JL}, s{S_JL}, {LSP}
    s_lshr_b32 s{S_JEND}, s{S_JEND}, {LSP}
    s_sub_u32 s{S_NEND}, s{S_JEND}, s{S_JL}
    s_mul_i32 s24, s22, {C.BM}
    s_lshl_b32 s25, s20, 7
    s_waitcnt lgkmcnt(0)
    """)
    srd(a, S_SRDP, 44, WS_B, 3 * 512 * 4096)
    a(f"""
    s_add_u32 s46, s44, {WS_H}
    s_addc_u32 s47, s45, 0
    s_mov_b32 s{S_SRDQ+2}, {2048*4096}
    s_mov_b32 s{S_SRDQ+3}, 0x00020000
    """)

    def step_setup(a):
        a(f"""
        s_lshr_b32 s26, s{S_JL}, 5
        s_and_b32 s{S_OFFQ}, s{S_JL}, 31
        s_lshl_b32 s{S_OFFQ}, s{S_OFFQ}, 7
        s_lshl_b32 s27, s26, 21
        s_add_u32 s{S_OFFP}, s{S_OFFQ}, s27
        s_cmp_eq_u32 s26, 0
        s_cselect_b64 s[{S_SRDQ}:{S_SRDQ+1}], s[40:41], s[42:43]
        s_cmp_ge_u32 s26, 2
        s_cselect_b64 s[{S_SRDQ}:{S_SRDQ+1}], s[46:47], s[{S_SRDQ}:{S_SRDQ+1}]
        s_add_u32 s{S_JL}, s{S_JL}, 1
        """)

    C.body(a, "L_g2", step_setup, 24, 25, 4096, 4096)
    t = C.V_TMP
    X = t + 20
    QOFF = [(n % 32) * 1024 + (m % 32) * 2 for (r, m, n) in sorted(C.quads()) if r < C.V_ACC + 16]
    assert len(QOFF) == 4 and max(QOFF) < 32768
    srd(a, 32, 44, WS_PART, 256 * SP * 8192)
    srd(a, 56, 44, WS_FLAG, 16384)
    srd(a, 60, 48, 0, 2048 * 1024)
    srd(a, 64, 52, 0, 2048 * 1024)
    a(f"""
    s_lshl_b32 s31, s{S_WAVE}, 11
    v_lshlrev_b32 v{t}, 4, v1
    s_and_b32 s36, s{S_WAVE}, 1
    s_lshl_b32 s36, s36, 1
    s_and_b32 s37, s23, 1
    s_add_u32 s36, s36, s37
    s_lshl_b32 s36, s36, 5
    s_add_u32 s36, s36, s25
    s_lshr_b32 s37, s{S_WAVE}, 1
    s_mul_i32 s37, s37, {MT}
    s_lshr_b32 s38, s23, 1
    s_add_u32 s37, s37, s38
    s_lshl_b32 s37, s37, 5
    s_add_u32 s37, s37, s24
    v_and_b32 v{t+1}, {C.LN_MASK}, v1
    v_add_u32 v{t+1}, s36, v{t+1}
    v_lshlrev_b32 v{t+1}, 10, v{t+1}
    v_lshrrev_b32 v{t+2}, {C.LM_SHIFT}, v1
    v_lshlrev_b32 v{t+2}, 2, v{t+2}
    v_add_u32 v{t+2}, s37, v{t+2}
    v_lshlrev_b32 v{t+2}, 1, v{t+2}
    v_add_u32 v{t+1}, v{t+1}, v{t+2}
    s_mov_b32 s36, 0
    s_mov_b32 s37, 0x4000
    """)
    for tl in range(SP):
        a(f"""
        s_cmp_eq_u32 s23, {tl}
        s_cbranch_scc1 L_g2_pub{tl}
        s_lshl_b32 s30, s28, {LSP}
        s_add_u32 s30, s30, {tl}
        s_lshl_b32 s30, s30, {LSP}
        s_add_u32 s30, s30, s23
        s_lshl_b32 s30, s30, 13
        s_add_u32 s30, s30, s31
        """)
        b = C.V_ACC + tl * 16
        r = t + 4 + 8 * (tl & 1)
        for i in range(8):
            a(f"v_cvt_pk_bf16_f32 v{r+i}, v{b+2*i}, v{b+2*i+1}")
        a(f"buffer_store_dwordx4 v[{r}:{r+3}], v{t}, s[32:35], s30 offen sc1")
        a(f"buffer_store_dwordx4 v[{r+4}:{r+7}], v{t}, s[32:35], s30 offen offset:1024 sc1")
        a.label(f"L_g2_pub{tl}")
    a("s_waitcnt vmcnt(0)")
    stamp(a, 3)
    for q in range(4):
        a(f"buffer_load_dwordx2 v[{X+2*q}:{X+2*q+1}], v{t+1}, s[60:63], s{36 + QOFF[q] // 16384} offen offset:{QOFF[q] % 16384}")
    a(f"""
    s_barrier
    s_cmp_lg_u32 s{S_WAVE}, 0
    s_cbranch_scc1 L_g2_wait
    s_lshl_b32 s29, s28, 8
    v_mov_b32 v{t+2}, 1
    v_mov_b32 v{t+3}, 0
    s_mov_b64 s[68:69], exec
    s_mov_b64 exec, 1
    buffer_atomic_add v{t+2}, v{t+3}, s[56:59], s29 offen
    """)
    a.label("L_g2_spin")
    a(f"""
    buffer_load_dword v{t+2}, v{t+3}, s[56:59], s29 offen sc1
    s_waitcnt vmcnt(0)
    v_readfirstlane_b32 s30, v{t+2}
    s_nop 3
    s_cmp_ge_u32 s30, {SP}
    s_cbranch_scc1 L_g2_spun
    s_sleep 1
    s_branch L_g2_spin
    """)
    a.label("L_g2_spun")
    a("s_mov_b64 exec, s[68:69]")
    a.label("L_g2_wait")
    a("s_barrier")
    stamp(a, 4)
    a(f"""
    s_lshl_b32 s38, s28, {LSP}
    s_add_u32 s38, s38, s23
    s_lshl_b32 s38, s38, {LSP}
    """)
    for tl in range(SP - 1):
        a(f"s_cmp_eq_u32 s23, {tl}")
        a(f"s_cbranch_scc1 L_g2_fin{tl}")
    for tl in [SP - 1] + list(range(SP - 1)):
        if tl != SP - 1:
            a.label(f"L_g2_fin{tl}")
        b = C.V_ACC + tl * 16
        for i in range(1, SP):
            a(f"""
            s_add_u32 s30, s38, {(tl + i) % SP}
            s_lshl_b32 s30, s30, 13
            s_add_u32 s30, s30, s31
            """)
            r = C.V_ACC + ((tl + i) % SP) * 16
            a(f"buffer_load_dwordx4 v[{r}:{r+3}], v{t}, s[32:35], s30 offen sc1")
            a(f"buffer_load_dwordx4 v[{r+4}:{r+7}], v{t}, s[32:35], s30 offen offset:1024 sc1")
        a(f"s_waitcnt vmcnt({2*(SP-1)})")
        for i in range(8):
            a(f"v_lshlrev_b32 v{t+2}, 16, v{X+i}")
            a(f"v_and_b32 v{t+3}, 0xffff0000, v{X+i}")
            a(f"v_add_f32 v{b+2*i}, v{b+2*i}, v{t+2}")
            a(f"v_add_f32 v{b+2*i+1}, v{b+2*i+1}, v{t+3}")
        for src in range(SP - 1):
            a(f"s_waitcnt vmcnt({2*(SP-2-src)})")
            for i in range(8):
                rr = C.V_ACC + ((tl + 1 + src) % SP) * 16 + i
                a(f"v_lshlrev_b32 v{t+2}, 16, v{rr}")
                a(f"v_and_b32 v{t+3}, 0xffff0000, v{rr}")
                a(f"v_add_f32 v{b+2*i}, v{b+2*i}, v{t+2}")
                a(f"v_add_f32 v{b+2*i+1}, v{b+2*i+1}, v{t+3}")
        for q in range(4):
            a(f"v_cvt_pk_bf16_f32 v{X+2*q}, v{b+4*q}, v{b+4*q+1}")
            a(f"v_cvt_pk_bf16_f32 v{X+2*q+1}, v{b+4*q+2}, v{b+4*q+3}")
            a(f"buffer_store_dwordx2 v[{X+2*q}:{X+2*q+1}], v{t+1}, s[64:67], s{36 + QOFF[q] // 16384} offen offset:{QOFF[q] % 16384}")
        if OPT.get("stamp"):
            a("s_waitcnt vmcnt(0)")
            stamp(a, 5)
            stamp_flush(a, "L_g2", t + 2)
        a("s_endpgm")
    a.label("L_g2_end")
    a("s_endpgm")
    return kernel_desc(name, X + 8)


def main():
    global ARGS
    ARGS = [x for x in sys.argv[1:] if "=" not in x]
    for x in sys.argv[1:]:
        if "=" in x:
            k, v = x.split("=")
            OPT[k] = int(v)
    hdr = open("cdna_kernels/" + NAME + ".s.ref").read().split("\n")
    top = [l for l in hdr if l.startswith(";") and "@launch" not in l and "Override" not in l and "grid=ceil" not in l]
    a = Asm()
    descs = []
    a.raw('.amdgcn_target "amdgcn-amd-amdhsa--gfx950"')
    a.raw(".text")
    descs.append(gen_prep(a))
    descs.append(gen_gemm1(a))
    descs.append(gen_gemm2(a))
    out = "\n".join(top) + "\n"
    out += f"; @launch kernel=prep_kernel grid=({PREP_WGS},1,1) block=(256,1,1) lds=0\n"
    out += f"; @launch kernel=gemm1_kernel grid=({G1_WGS},1,1) block=(512,1,1) lds={G1.LDS}\n"
    out += f"; @launch kernel=gemm2_kernel grid=({G2_WGS},1,1) block=(512,1,1) lds={G2.LDS}\n"
    if OPT.get("report"):
        out += f"; @launch kernel=report_kernel grid=(1,1,1) block=(64,1,1) lds=0\n"
        kernel_begin(a, "report_kernel")
        a(f"""
        s_cmp_ge_u32 s2, 1
        s_cbranch_scc1 L_rep_end
        s_load_dwordx4 s[4:7], s[0:1], {KA_DBG}
        s_waitcnt lgkmcnt(0)
        """)
        srd(a, 8, 4, 0, 256)
        srd(a, 12, 6, 59 << 20, 8 << 20)
        a("""
        v_lshlrev_b32 v1, 9, v0
        v_mov_b32 v2, 0
        buffer_load_dword v10, v2, s[12:15], 0 offen
        """)
        a(f"s_mov_b32 s16, {3 << 20}")
        a(f"s_mov_b32 s17, {4 << 20}")
        for k in range(5):
            a(f"buffer_load_dword v{11+k}, v1, s[12:15], s16 offen offset:{8*k}")
        for k in range(6):
            a(f"buffer_load_dword v{16+k}, v1, s[12:15], s17 offen offset:{8*k}")
        for k, task in enumerate((2040, 3450, 4860)):
            a(f"buffer_load_dword v{22+k}, v2, s[12:15], 0 offen offset:0") if False else None
            a(f"s_mov_b32 s18, {32768 + task*4}")
            a(f"buffer_load_dword v{22+k}, v2, s[12:15], s18 offen")
        for k, task in enumerate((2040, 4860)):
            a(f"s_mov_b32 s18, {task*4}")
            a(f"buffer_load_dword v{25+k}, v2, s[12:15], s18 offen")
        a("s_waitcnt vmcnt(0)")
        for k in range(16):
            a(f"v_sub_u32 v{11+k}, v{11+k}, v10")
        a("s_mov_b64 exec, 1")
        for k in range(16):
            a(f"buffer_store_dword v{11+k}, v2, s[8:11], 0 offen offset:{4*k}")
        a.label("L_rep_end")
        a("s_endpgm")
        descs.append(kernel_desc("report_kernel", 32))
    for i in range(OPT.get("dummy", 0)):
        out += f"; @launch kernel=dummy_kernel grid=(1,1,1) block=(64,1,1) lds=0\n"
    if OPT.get("dummy", 0):
        kernel_begin(a, "dummy_kernel")
        a("s_endpgm")
        descs.append(kernel_desc("dummy_kernel", 8))
    out += a.text()
    out += '.section .rodata,"a"\n'
    for d in descs:
        out += ".p2align 6\n" + d
    path = ARGS[0] if ARGS else "cdna_kernels/" + NAME + ".s"
    open(path, "w").write(out)


if __name__ == "__main__":
    main()
```

```python
import struct
import sys

NAME = "parallel_sum__spectral_fnet__geglu_ffn__prompt"
OPT = {}

WS_XN = 0
WS_WGU = 2 << 20
WS_B = 8 << 20
WS_H = 16 << 20
WS_PART = 32 << 20
WS_FLAG = 30 << 20
WS_SIZE = 268435456

KA_X, KA_WSRE, KA_WSIM, KA_WDRE, KA_WDIM, KA_BX, KA_WG, KA_WU, KA_WDN, KA_OUT, KA_DBG, KA_WS = [8 * i for i in range(12)]


def f32bits(x):
    return struct.unpack("<I", struct.pack("<f", x))[0]


class Asm:
    def __init__(self):
        self.lines = []

    def __call__(self, s):
        for ln in s.strip("\n").split("\n"):
            self.lines.append("    " + ln.strip())

    def label(self, s):
        self.lines.append(s + ":")

    def raw(self, s):
        self.lines.append(s)

    def text(self):
        return "\n".join(self.lines) + "\n"


def kernel_begin(a, name):
    a.raw(f".globl {name}")
    a.raw(".p2align 8")
    a.raw(f".type {name},@function")
    a.label(name)


def kernel_desc(name, vgpr, sgpr=96):
    acc = (vgpr + 3) // 4 * 4
    return f""".amdhsa_kernel {name}
  .amdhsa_next_free_vgpr {vgpr}
  .amdhsa_next_free_sgpr {sgpr}
  .amdhsa_accum_offset {acc}
  .amdhsa_group_segment_fixed_size 0
  .amdhsa_kernarg_size 96
  .amdhsa_user_sgpr_count 2
  .amdhsa_user_sgpr_kernarg_segment_ptr 1
  .amdhsa_system_sgpr_workgroup_id_x 1
  .amdhsa_float_denorm_mode_32 3
.end_amdhsa_kernel
"""


def srd(a, d, base, off, size):
    if off:
        a(f"s_add_u32 s{d}, s{base}, {off}")
        a(f"s_addc_u32 s{d+1}, s{base+1}, 0")
    else:
        a(f"s_mov_b32 s{d}, s{base}")
        a(f"s_mov_b32 s{d+1}, s{base+1}")
    a(f"s_mov_b32 s{d+2}, {size}")
    a(f"s_mov_b32 s{d+3}, 0x00020000")


N_LN = 2048
N_WGU = 22 * 64
N_WD = 8 * 176
N_PF = 0
PREP_WGS = 0


def gen_prep(a):
    global N_PF, PREP_WGS
    N_PF = 1024 if OPT.get("pf", 0) == 1 else 0
    PREP_WGS = (N_LN + N_WGU + N_WD + N_PF) // 4
    name = "prep_kernel"
    kernel_begin(a, name)
    PSTAMP = ""
    if OPT.get("stamp"):
        PSTAMP = f"""
    s_memrealtime s[40:41]
    s_add_u32 s44, s14, {59 << 20}
    s_addc_u32 s45, s15, 0
    s_mov_b32 s46, 65536
    s_mov_b32 s47, 0x00020000
    s_lshl_b32 s48, s16, 2
    s_add_u32 s49, s48, 32768
    s_waitcnt lgkmcnt(0)
    v_mov_b32 v30, s40
    v_mov_b32 v31, 0
    buffer_store_dword v30, v31, s[44:47], s48 offen
    """
    a(f"""
    s_cmp_ge_u32 s2, {PREP_WGS}
    s_cbranch_scc1 L_prep_end
    s_load_dwordx2 s[4:5], s[0:1], {KA_X}
    s_load_dwordx4 s[8:11], s[0:1], {KA_WG}
    s_load_dwordx2 s[12:13], s[0:1], {KA_WDN}
    s_load_dwordx2 s[14:15], s[0:1], {KA_WS}
    v_lshrrev_b32 v1, 6, v0
    v_and_b32 v2, 63, v0
    s_nop 0
    v_readfirstlane_b32 s3, v1
    s_lshl_b32 s16, s2, 2
    s_nop 3
    s_add_u32 s16, s16, s3
    s_waitcnt lgkmcnt(0)
    {PSTAMP}
    s_cmp_lt_u32 s16, {N_PF}
    s_cbranch_scc1 L_prep_pf
    s_sub_u32 s16, s16, {N_PF}
    s_add_u32 s16, s16, {N_LN}
    s_cmp_lt_u32 s16, {N_LN + N_WGU + N_WD}
    s_cbranch_scc1 L_prep_wgu
    s_sub_u32 s16, s16, {N_LN + N_WGU + N_WD}
    """)
    srd(a, 20, 4, 0, 2048 * 1024)
    srd(a, 24, 14, WS_XN, 2048 * 1024)
    a("""
    s_lshl_b32 s17, s16, 10
    v_lshlrev_b32 v3, 4, v2
    buffer_load_dwordx4 v[4:7], v3, s[20:23], s17 offen
    s_cmp_lg_u32 s16, 0
    s_cbranch_scc1 L_prep_noflag
    """)
    srd(a, 28, 14, WS_FLAG, 16384)
    a("""
    v_mov_b32 v8, 0
    v_mov_b32 v9, 0
    v_mov_b32 v10, 0
    v_mov_b32 v11, 0
    s_mov_b32 s32, 0
    """)
    for i in range(16):
        a(f"buffer_store_dwordx4 v[8:11], v3, s[28:31], s32 offen")
        a("s_add_u32 s32, s32, 1024")
    a.label("L_prep_noflag")
    a("""
    v_lshlrev_b32 v30, 2, v2
    v_xor_b32 v31, 4, v30
    v_xor_b32 v32, 8, v30
    v_xor_b32 v33, 16, v30
    v_xor_b32 v34, 32, v30
    v_xor_b32 v35, 64, v30
    v_xor_b32 v36, 128, v30
    s_waitcnt vmcnt(0)
    """)
    for i in range(4):
        a(f"v_lshlrev_b32 v{8+2*i}, 16, v{4+i}")
        a(f"v_and_b32 v{9+2*i}, 0xffff0000, v{4+i}")
    a("""
    v_add_f32 v16, v8, v9
    v_add_f32 v17, v10, v11
    v_add_f32 v18, v12, v13
    v_add_f32 v19, v14, v15
    v_add_f32 v16, v16, v17
    v_add_f32 v18, v18, v19
    v_add_f32 v16, v16, v18
    """)
    for r in range(31, 37):
        a(f"""
        ds_bpermute_b32 v17, v{r}, v16
        s_waitcnt lgkmcnt(0)
        v_add_f32 v16, v16, v17
        """)
    a(f"v_mul_f32 v16, 0x{f32bits(1.0/512):08x}, v16")
    for i in range(8):
        a(f"v_sub_f32 v{20+i}, v{8+i}, v16")
    a("v_mul_f32 v17, v20, v20")
    for i in range(1, 8):
        a(f"v_fmac_f32 v17, v{20+i}, v{20+i}")
    for r in range(31, 37):
        a(f"""
        ds_bpermute_b32 v18, v{r}, v17
        s_waitcnt lgkmcnt(0)
        v_add_f32 v17, v17, v18
        """)
    a(f"""
    v_mul_f32 v17, 0x{f32bits(1.0/512):08x}, v17
    v_cvt_pk_bf16_f32 v18, v16, v17
    v_lshlrev_b32 v16, 16, v18
    v_and_b32 v17, 0xffff0000, v18
    v_add_f32 v17, 0x{f32bits(1e-5):08x}, v17
    v_cvt_pk_bf16_f32 v18, v17, v17
    v_lshlrev_b32 v17, 16, v18
    v_sqrt_f32 v17, v17
    s_nop 0
    v_cvt_pk_bf16_f32 v18, v17, v17
    v_lshlrev_b32 v17, 16, v18
    v_rcp_f32 v19, v17
    """)
    for i in range(8):
        a(f"v_sub_f32 v{20+i}, v{8+i}, v16")
    for i in range(4):
        a(f"v_cvt_pk_bf16_f32 v{4+i}, v{20+2*i}, v{21+2*i}")
    for i in range(4):
        a(f"v_lshlrev_b32 v{8+2*i}, 16, v{4+i}")
        a(f"v_and_b32 v{9+2*i}, 0xffff0000, v{4+i}")
    for i in range(8):
        a(f"v_mul_f32 v{20+i}, v{8+i}, v19")
    for i in range(8):
        a(f"v_fma_f32 v{8+i}, -v{20+i}, v17, v{8+i}")
    for i in range(8):
        a(f"v_fmac_f32 v{20+i}, v{8+i}, v19")
    for i in range(4):
        a(f"v_cvt_pk_bf16_f32 v{4+i}, v{20+2*i}, v{21+2*i}")
    a("""
    buffer_store_dwordx4 v[4:7], v3, s[24:27], s17 offen
    """)
    if OPT.get("stamp"):
        a("""
        s_waitcnt vmcnt(0)
        s_memrealtime s[40:41]
        s_waitcnt lgkmcnt(0)
        v_mov_b32 v30, s40
        v_mov_b32 v31, 0
        buffer_store_dword v30, v31, s[44:47], s49 offen
        """)
    a("s_endpgm")
    a.label("L_prep_wgu")
    a(f"""
    s_cmp_ge_u32 s16, {N_LN + N_WGU}
    s_cbranch_scc1 L_prep_wd
    s_sub_u32 s16, s16, {N_LN}
    s_lshr_b32 s17, s16, 6
    s_and_b32 s18, s16, 63
    """)
    srd(a, 20, 8, 0, 512 * 2752)
    srd(a, 24, 10, 0, 512 * 2752)
    srd(a, 28, 14, WS_WGU, 2816 * 1024)
    a("""
    s_lshl_b32 s19, s17, 6
    v_add_u32 v3, s19, v2
    v_lshlrev_b32 v4, 1, v3
    s_mul_i32 s32, s18, 22016
    """)
    for j in range(8):
        a(f"buffer_load_ushort v{16+j}, v4, s[20:23], s32 offen")
        a(f"buffer_load_ushort v{24+j}, v4, s[24:27], s32 offen")
        if j < 7:
            a("s_add_u32 s32, s32, 2752")
    a("""
    v_lshrrev_b32 v5, 5, v3
    v_lshlrev_b32 v5, 6, v5
    v_and_b32 v6, 31, v3
    v_add_u32 v5, v5, v6
    v_lshlrev_b32 v5, 10, v5
    s_lshl_b32 s33, s18, 4
    v_mov_b32 v7, 1376
    v_cmp_gt_u32 vcc, v7, v3
    s_waitcnt vmcnt(0)
    """)
    for j in range(8):
        a(f"v_lshl_or_b32 v{8+j}, v{17+2*j}, 16, v{16+2*j}")
    for j in range(8):
        a(f"v_cndmask_b32 v{8+j}, 0, v{8+j}, vcc")
    a("""
    buffer_store_dwordx4 v[8:11], v5, s[28:31], s33 offen
    s_add_u32 s33, s33, 32768
    buffer_store_dwordx4 v[12:15], v5, s[28:31], s33 offen
    """)
    if OPT.get("stamp"):
        a("""
        s_waitcnt vmcnt(0)
        s_memrealtime s[40:41]
        s_waitcnt lgkmcnt(0)
        v_mov_b32 v30, s40
        v_mov_b32 v31, 0
        buffer_store_dword v30, v31, s[44:47], s49 offen
        """)
    a("s_endpgm")
    a.label("L_prep_wd")
    a(f"""
    s_sub_u32 s16, s16, {N_LN + N_WGU}
    s_mul_hi_u32 s17, s16, {((1 << 32) + 175) // 176}
    s_mul_i32 s18, s17, 176
    s_sub_u32 s18, s16, s18
    """)
    srd(a, 20, 12, 0, 1376 * 1024)
    srd(a, 28, 14, WS_B + (4 << 20), 512 * 4096)
    a("""
    s_lshl_b32 s19, s17, 6
    v_add_u32 v3, s19, v2
    v_lshlrev_b32 v4, 1, v3
    s_lshl_b32 s32, s18, 13
    """)
    for j in range(8):
        a(f"buffer_load_ushort v{16+j}, v4, s[20:23], s32 offen")
        if j < 7:
            a("s_add_u32 s32, s32, 1024")
    a("""
    v_lshlrev_b32 v5, 12, v3
    s_lshl_b32 s33, s18, 4
    s_waitcnt vmcnt(0)
    """)
    for j in range(4):
        a(f"v_lshl_or_b32 v{8+j}, v{17+2*j}, 16, v{16+2*j}")
    a("""
    buffer_store_dwordx4 v[8:11], v5, s[28:31], s33 offen
    """)
    if OPT.get("stamp"):
        a("""
        s_waitcnt vmcnt(0)
        s_memrealtime s[40:41]
        s_waitcnt lgkmcnt(0)
        v_mov_b32 v30, s40
        v_mov_b32 v31, 0
        buffer_store_dword v30, v31, s[44:47], s49 offen
        """)
    a("s_endpgm")
    a.label("L_prep_pf")
    a(f"""
    s_load_dwordx4 s[20:23], s[0:1], {KA_WSRE}
    s_lshl_b32 s17, s16, 13
    v_lshlrev_b32 v3, 4, v2
    s_waitcnt lgkmcnt(0)
    """)
    srd(a, 24, 20, 0, 2048 * 4096)
    srd(a, 28, 22, 0, 2048 * 4096)
    for i in range(8):
        a(f"buffer_load_dwordx4 v[{4+4*(i%4)}:{7+4*(i%4)}], v3, s[24:27], s17 offen")
        a(f"buffer_load_dwordx4 v[{20+4*(i%4)}:{23+4*(i%4)}], v3, s[28:31], s17 offen")
        a("s_add_u32 s17, s17, 1024")
    a.label("L_prep_end")
    a("s_endpgm")
    return kernel_desc(name, 40)


S_SRDP = 4
S_SRDQ = 8
S_OFFP = 12
S_OFFQ = 13
S_WOFF = 14
S_N = 15
S_NEND = 16
S_JL = 17
S_JEND = 18
S_WAVE = 19
S_WOFFQ = 39


def stamp(a, k):
    if OPT.get("stamp"):
        a(f"s_memrealtime s[{74+2*k}:{75+2*k}]")


def stamp_flush(a, pfx, T, n=8):
    if OPT.get("stamp"):
        a("s_waitcnt lgkmcnt(0)")
        srd(a, 68, 44, (62 << 20) + (0 if pfx == "L_g1" else (1 << 20)), 1 << 20)
        a(f"""
        s_lshl_b32 s72, s2, 3
        s_add_u32 s72, s72, s{S_WAVE}
        s_lshl_b32 s72, s72, 6
        v_mov_b32 v{T}, 0
        """)
        for i in range(2 * n):
            a(f"v_mov_b32 v{T+1}, s{74+i}")
            a(f"buffer_store_dword v{T+1}, v{T}, s[68:71], s72 offen offset:{4*i}")


class Core:
    def __init__(self, MT, NS):
        self.MT, self.NS = MT, NS
        self.BM = 64 * MT
        self.PSZ = self.BM * 128
        self.QSZ = 16384
        self.QBASE = NS * self.PSZ
        self.LDS = self.QBASE + NS * self.QSZ
        self.NPI = self.BM // 32
        self.NDMA = self.NPI + 4
        self.V_LDP = 4
        self.V_LDQ = 12
        self.M16 = bool(OPT.get("m16", 0))
        self.V_FA = 4
        if self.M16:
            self.PA = 4
            self.PB = self.PA + MT * 4
            self.QA = self.PB + MT * 4
            self.QB = self.QA + 16
            self.V_ACC = self.QB + 16
            nkk, fr = 2, 2048
            nP, nQ = 2 * MT, 4
        else:
            self.FS = (MT + 2) * 4
            self.V_FB = self.V_FA + self.FS
            self.V_ACC = self.V_FB + self.FS
            nkk, fr = 4, 4096
            nP, nQ = MT, 2
        self.V_RD = self.V_ACC + MT * 32
        self.rd = {}
        n = 0
        for op, base, ssz, nt in (("P", 0, self.PSZ, nP), ("Q", self.QBASE, self.QSZ, nQ)):
            wins = sorted({(base + st * ssz + t * fr) >> 16 for st in range(NS) for t in range(nt)})
            for w in wins:
                for kk in range(nkk):
                    self.rd[(op, kk, w)] = self.V_RD + n
                    n += 1
        self.V_TMP = (self.V_RD + n + 1) // 2 * 2
        self.LN_MASK = 15 if self.M16 else 31
        self.LM_SHIFT = 4 if self.M16 else 5

    def acc(self, mt, nt):
        return self.V_ACC + (mt * 2 + nt) * 16

    def accs(self, mt, nt):
        b = self.acc(mt, nt)
        return f"v[{b}:{b+15}]"

    def acc16(self, mi, ni):
        return self.V_ACC + ((mi >> 1) * 2 + (ni >> 1)) * 16 + ((mi & 1) * 2 + (ni & 1)) * 4

    def quads(self):
        out = []
        if self.M16:
            for mi in range(2 * self.MT):
                for ni in range(4):
                    out.append((self.acc16(mi, ni), mi * 16, ni * 16))
        else:
            for mt in range(self.MT):
                for nt in range(2):
                    for q in range(4):
                        out.append((self.acc(mt, nt) + 4 * q, mt * 32 + 8 * q, nt * 32))
        return out

    def setup_loader(self, a, rowP_s, rowQ_s, strideP, strideQ):
        t = 20
        rq = self.BM // 4
        a(f"""
        s_sub_u32 s{S_WOFF}, s{S_WAVE}, 4
        s_lshl_b32 s{S_WOFFQ}, s{S_WOFF}, 12
        s_mul_i32 s30, s{S_WOFF}, {rq}
        s_lshl_b32 s31, s{S_WOFF}, 5
        s_mul_i32 s{S_WOFF}, s{S_WOFF}, {rq*128}
        v_lshrrev_b32 v{t}, 3, v1
        v_and_b32 v{t+2}, 7, v1
        v_lshrrev_b32 v{t+3}, 4, v1
        v_xor_b32 v{t+2}, v{t+2}, v{t+3}
        """)
        for (vld, row_s, stride, n, sw) in ((self.V_LDP, rowP_s, strideP, self.NPI, 30), (self.V_LDQ, rowQ_s, strideQ, 4, 31)):
            sh = stride.bit_length() - 1
            assert 1 << sh == stride
            for i in range(n):
                a(f"v_add_u32 v{t+4}, s{row_s}, v{t}")
                a(f"v_add_u32 v{t+4}, s{sw}, v{t+4}")
                if i:
                    a(f"v_add_u32 v{t+4}, {8*i}, v{t+4}")
                a(f"v_lshlrev_b32 v{t+4}, {sh}, v{t+4}")
                if i & 1:
                    a(f"v_xor_b32 v{t+5}, 4, v{t+2}")
                else:
                    a(f"v_mov_b32 v{t+5}, v{t+2}")
                a(f"v_lshlrev_b32 v{t+5}, 4, v{t+5}")
                a(f"v_add_u32 v{vld+i}, v{t+4}, v{t+5}")
                if i & 3:
                    a(f"v_subrev_u32 v{vld+i}, {1024*(i&3)}, v{vld+i}")

    def setup_compute(self, a):
        t = self.V_TMP
        if self.M16:
            a(f"""
            v_and_b32 v{t}, 15, v1
            v_lshrrev_b32 v{t+1}, 4, v1
            v_lshrrev_b32 v{t+2}, 1, v{t}
            v_xor_b32 v{t+2}, v{t+2}, v{t+1}
            """)
        else:
            a(f"""
            v_and_b32 v{t}, 31, v1
            v_lshrrev_b32 v{t+1}, 5, v1
            v_lshrrev_b32 v{t+2}, 1, v1
            v_and_b32 v{t+2}, 7, v{t+2}
            v_xor_b32 v{t+2}, v{t+2}, v{t+1}
            """)
        a(f"""
        v_lshrrev_b32 v{t+3}, 1, v2
        v_mul_u32_u24 v{t+3}, {self.MT*32}, v{t+3}
        v_add_u32 v{t+3}, v{t+3}, v{t}
        v_lshlrev_b32 v{t+3}, 7, v{t+3}
        v_and_b32 v{t+4}, 1, v2
        v_lshlrev_b32 v{t+4}, 6, v{t+4}
        v_add_u32 v{t+4}, v{t+4}, v{t}
        v_lshlrev_b32 v{t+4}, 7, v{t+4}
        """)
        for (op, kk, w), r in self.rd.items():
            a(f"v_xor_b32 v{t+5}, {(4 if self.M16 else 2)*kk}, v{t+2}")
            a(f"v_lshlrev_b32 v{t+5}, 4, v{t+5}")
            a(f"v_add_u32 v{r}, v{t+3 if op == 'P' else t+4}, v{t+5}")
            if w:
                a(f"v_add_u32 v{r}, {w << 16}, v{r}")
        for i in range(self.MT * 32):
            a(f"v_mov_b32 v{self.V_ACC+i}, 0")

    def rdP16(self, a, dst, stage, kk, mh):
        for j in range(self.MT):
            off = stage * self.PSZ + (mh * self.MT + j) * 2048
            a(f"ds_read_b128 v[{dst+4*j}:{dst+4*j+3}], v{self.rd[('P', kk, off >> 16)]} offset:{off & 0xffff}")

    def rdQ16(self, a, dst, stage, kk):
        for j in range(4):
            off = self.QBASE + stage * self.QSZ + j * 2048
            a(f"ds_read_b128 v[{dst+4*j}:{dst+4*j+3}], v{self.rd[('Q', kk, off >> 16)]} offset:{off & 0xffff}")

    def mfma16(self, a, P, Q, mh):
        for j in range(self.MT):
            for ni in range(4):
                r = self.acc16(mh * self.MT + j, ni)
                a(f"v_mfma_f32_16x16x32_bf16 v[{r}:{r+3}], v[{P+4*j}:{P+4*j+3}], v[{Q+4*ni}:{Q+4*ni+3}], v[{r}:{r+3}]")

    def dma(self, a, stage):
        for i in range(self.NPI):
            if i % 4 == 0:
                a(f"s_add_u32 m0, s{S_WOFF}, {stage*self.PSZ + i*1024}")
                a("s_nop 0")
            a(f"buffer_load_dwordx4 v{self.V_LDP+i}, s[{S_SRDP}:{S_SRDP+3}], s{S_OFFP} offen offset:{1024*(i&3)} lds")
        a(f"s_add_u32 m0, s{S_WOFFQ}, {self.QBASE + stage*self.QSZ}")
        a("s_nop 0")
        for i in range(4):
            a(f"buffer_load_dwordx4 v{self.V_LDQ+i}, s[{S_SRDQ}:{S_SRDQ+3}], s{S_OFFQ} offen offset:{1024*i} lds")

    def reads(self, a, fset, stage, kk):
        for mt in range(self.MT):
            off = stage * self.PSZ + mt * 4096
            a(f"ds_read_b128 v[{fset+4*mt}:{fset+4*mt+3}], v{self.rd[('P', kk, off >> 16)]} offset:{off & 0xffff}")
        for nt in range(2):
            off = self.QBASE + stage * self.QSZ + nt * 4096
            qb = fset + 4 * self.MT + 4 * nt
            a(f"ds_read_b128 v[{qb}:{qb+3}], v{self.rd[('Q', kk, off >> 16)]} offset:{off & 0xffff}")

    def mfma(self, a, fset, part=None):
        for mt in range(self.MT):
            if part is not None and (mt < self.MT // 2) != (part == 0):
                continue
            for nt in range(2):
                qb = fset + 4 * self.MT + 4 * nt
                if not OPT.get("nomfma"):
                    a(f"v_mfma_f32_32x32x16_bf16 {self.accs(mt,nt)}, v[{fset+4*mt}:{fset+4*mt+3}], v[{qb}:{qb+3}], {self.accs(mt,nt)}")

    def body(self, a, pfx, step_setup, rowP_s, rowQ_s, strideP, strideQ, tail=None, pre=None, filler=None):
        NS = self.NS
        nr = self.MT + 2
        a(f"""
        v_and_b32 v1, 63, v0
        v_lshrrev_b32 v2, 6, v0
        s_nop 0
        v_readfirstlane_b32 s{S_WAVE}, v2
        s_nop 3
        s_mov_b32 s{S_N}, 0
        s_cmp_lt_u32 s{S_WAVE}, 4
        s_cbranch_scc1 {pfx}_compute
        """)

        if OPT.get("prio") == 2:
            a("s_setprio 1")
        self.setup_loader(a, rowP_s, rowQ_s, strideP, strideQ)
        for st in range(NS - 1):
            step_setup(a)
            self.dma(a, st)
        a(f"""
        s_waitcnt vmcnt({(NS-2)*self.NDMA})
        s_barrier
        """)
        a.label(f"{pfx}_lloop")
        for u in range(NS):
            a(f"s_cmp_ge_u32 s{S_JL}, s{S_JEND}")
            a(f"s_cbranch_scc1 {pfx}_lskip{u}")
            step_setup(a)
            self.dma(a, (u + NS - 1) % NS)
            a(f"s_waitcnt vmcnt({(NS-2)*self.NDMA})")
            a(f"s_branch {pfx}_lbar{u}")
            a.label(f"{pfx}_lskip{u}")
            a("s_waitcnt vmcnt(0)")
            a.label(f"{pfx}_lbar{u}")
            a("s_barrier")
            a(f"s_add_u32 s{S_N}, s{S_N}, 1")
            a(f"s_cmp_ge_u32 s{S_N}, s{S_NEND}")
            if u < NS - 1:
                a(f"s_cbranch_scc1 {pfx}_ldone")
            else:
                a(f"s_cbranch_scc0 {pfx}_lloop")
        a.label(f"{pfx}_ldone")
        if tail:
            tail(a)
        a("s_endpgm")
        a.label(f"{pfx}_compute")
        if OPT.get("prio") == 1:
            a("s_setprio 1")
        self.setup_compute(a)
        if pre:
            pre(a)
        a("s_barrier")
        if OPT.get("stamp"):
            a("s_memtime s[60:61]")
            a("s_memrealtime s[62:63]")
            a("s_memrealtime s[76:77]")
            a("s_waitcnt lgkmcnt(0)")
        MT = self.MT
        if self.M16:
            self.rdP16(a, self.PA, 0, 0, 0)
            self.rdQ16(a, self.QA, 0, 0)
        else:
            self.reads(a, self.V_FA, 0, 0)
        a.label(f"{pfx}_loop")
        for u in range(NS):
            if self.M16:
                self.rdP16(a, self.PB, u, 0, 1)
                a(f"s_waitcnt lgkmcnt({MT})")
                self.mfma16(a, self.PA, self.QA, 0)
                if filler:
                    filler(a)
                self.rdP16(a, self.PA, u, 1, 0)
                self.rdQ16(a, self.QB, u, 1)
                a(f"s_waitcnt lgkmcnt({MT+4})")
                self.mfma16(a, self.PB, self.QA, 1)
                self.rdP16(a, self.PB, u, 1, 1)
                a(f"s_waitcnt lgkmcnt({MT})")
                self.mfma16(a, self.PA, self.QB, 0)
                if filler:
                    filler(a)
                a("s_waitcnt lgkmcnt(0)")
                a("s_barrier")
                self.rdP16(a, self.PA, (u + 1) % NS, 0, 0)
                self.rdQ16(a, self.QA, (u + 1) % NS, 0)
                self.mfma16(a, self.PB, self.QB, 1)
            else:
                self.reads(a, self.V_FB, u, 1)
                a(f"s_waitcnt lgkmcnt({nr})")
                self.mfma(a, self.V_FA)
                if filler:
                    filler(a)
                self.reads(a, self.V_FA, u, 2)
                a(f"s_waitcnt lgkmcnt({nr})")
                self.mfma(a, self.V_FB)
                self.reads(a, self.V_FB, u, 3)
                a(f"s_waitcnt lgkmcnt({nr})")
                self.mfma(a, self.V_FA)
                if filler:
                    filler(a)
                a("s_waitcnt lgkmcnt(0)")
                if OPT.get("split"):
                    self.mfma(a, self.V_FB, 0)
                    a("s_barrier")
                    self.reads(a, self.V_FA, (u + 1) % NS, 0)
                    self.mfma(a, self.V_FB, 1)
                else:
                    a("s_barrier")
                    self.reads(a, self.V_FA, (u + 1) % NS, 0)
                    self.mfma(a, self.V_FB)
            a(f"s_add_u32 s{S_N}, s{S_N}, 1")
            a(f"s_cmp_ge_u32 s{S_N}, s{S_NEND}")
            if u < NS - 1:
                a(f"s_cbranch_scc1 {pfx}_done")
            else:
                a(f"s_cbranch_scc0 {pfx}_loop")
        a.label(f"{pfx}_done")
        a("s_waitcnt lgkmcnt(0)")
        a("s_nop 15")
        if OPT.get("stamp"):
            T = self.V_TMP
            a("s_memtime s[64:65]")
            a("s_memrealtime s[66:67]")
            a("s_memrealtime s[78:79]")
            a("s_waitcnt lgkmcnt(0)")
            srd(a, 68, 44, (60 << 20) + (0 if pfx == "L_g1" else (1 << 20)), 1 << 20)
            a(f"""
            s_lshl_b32 s72, s2, 3
            s_add_u32 s72, s72, s{S_WAVE}
            s_lshl_b32 s72, s72, 5
            v_mov_b32 v{T}, 0
            """)
            for i in range(8):
                a(f"v_mov_b32 v{T+1}, s{60+i}")
                a(f"buffer_store_dword v{T+1}, v{T}, s[68:71], s72 offen offset:{4*i}")


G1 = None
G1_WGS = 240


def gen_gemm1(a):
    global G1
    C = G1 = Core(4, 3)
    name = "gemm1_kernel"
    kernel_begin(a, name)
    a(f"""
    s_cmp_ge_u32 s2, {G1_WGS}
    s_cbranch_scc1 L_g1_end
    {"s_memrealtime s[74:75]" if OPT.get("stamp") else ""}
    s_cmp_ge_u32 s2, 240
    s_cbranch_scc1 L_g1_pf
    s_load_dwordx4 s[40:43], s[0:1], {KA_WDRE}
    s_load_dwordx2 s[44:45], s[0:1], {KA_WS}
    s_waitcnt lgkmcnt(0)
    s_cmp_ge_u32 s2, 64
    s_cbranch_scc1 L_g1_ffn
    """)
    srd(a, S_SRDP, 44, WS_XN, 2048 * 1024)
    a("""
    s_lshr_b32 s21, s2, 3
    s_and_b32 s24, s2, 7
    s_lshl_b32 s24, s24, 8
    s_cmp_ge_u32 s21, 4
    s_cselect_b64 s[46:47], s[42:43], s[40:41]
    s_and_b32 s25, s21, 3
    s_lshl_b32 s25, s25, 7
    """)
    srd(a, S_SRDQ, 46, 0, 512 * 1024)
    a("s_branch L_g1_main")
    a.label("L_g1_ffn")
    srd(a, S_SRDP, 44, WS_WGU, 2816 * 1024)
    srd(a, S_SRDQ, 44, WS_XN, 2048 * 1024)
    a("""
    s_sub_u32 s23, s2, 64
    s_and_b32 s25, s23, 15
    s_lshl_b32 s25, s25, 7
    s_lshr_b32 s24, s23, 4
    s_lshl_b32 s24, s24, 8
    s_mov_b32 s21, 8
    """)
    a.label("L_g1_main")
    a(f"""
    s_mov_b32 s26, s{S_SRDP+2}
    s_mov_b32 s27, s{S_SRDQ+2}
    s_mov_b32 s{S_JL}, 0
    s_mov_b32 s{S_JEND}, 8
    s_mov_b32 s{S_NEND}, 8
    """)

    def step_setup(a):
        a(f"""
        s_lshl_b32 s{S_OFFP}, s{S_JL}, 7
        s_mov_b32 s{S_OFFQ}, s{S_OFFP}
        s_cmp_lt_u32 s{S_JL}, s{S_JEND}
        s_cselect_b32 s{S_SRDP+2}, s26, 0
        s_cselect_b32 s{S_SRDQ+2}, s27, 0
        s_add_u32 s{S_JL}, s{S_JL}, 1
        """)

    PFV = C.V_TMP + 12

    def pre(a):
        a(f"""
        s_load_dwordx4 s[48:51], s[0:1], {KA_WSRE}
        s_lshl_b32 s38, s2, 2
        s_add_u32 s38, s38, s{S_WAVE}
        s_lshl_b32 s38, s38, 10
        v_lshlrev_b32 v{PFV+8}, 4, v1
        s_waitcnt lgkmcnt(0)
        """)
        srd(a, 52, 48, 0, 2048 * 4096)
        srd(a, 56, 50, 0, 2048 * 4096)

    def filler(a):
        a(f"buffer_load_dwordx4 v[{PFV}:{PFV+3}], v{PFV+8}, s[52:55], s38 offen")
        a(f"buffer_load_dwordx4 v[{PFV+4}:{PFV+7}], v{PFV+8}, s[56:59], s38 offen")
        a(f"s_add_u32 s38, s38, {960*1024}")

    def tail(a):
        srd(a, 52, 44, WS_PART, 8 << 20)
        a(f"""
        s_lshl_b32 s38, s2, 2
        s_add_u32 s38, s38, s{S_WAVE}
        s_sub_u32 s38, s38, 4
        s_lshl_b32 s38, s38, 10
        v_lshlrev_b32 v3, 4, v1
        v_mov_b32 v4, -1
        v_mov_b32 v5, -1
        v_mov_b32 v6, -1
        v_mov_b32 v7, -1
        """)
        for i in range(9):
            a("buffer_store_dwordx4 v[4:7], v3, s[52:55], s38 offen")
            a(f"s_add_u32 s38, s38, {960*1024}")

    if OPT.get("pf", 0) == 2:
        C.body(a, "L_g1", step_setup, 24, 25, 1024, 1024, None, pre, filler)
    else:
        C.body(a, "L_g1", step_setup, 24, 25, 1024, 1024, tail if OPT.get("sent", 0) else None)
    t = C.V_TMP
    a(f"""
    v_and_b32 v{t}, {C.LN_MASK}, v1
    v_lshrrev_b32 v{t+1}, {C.LM_SHIFT}, v1
    s_lshr_b32 s28, s{S_WAVE}, 1
    s_and_b32 s29, s{S_WAVE}, 1
    s_cmp_ge_u32 s21, 8
    s_cbranch_scc1 L_g1_epi_ffn
    """)
    RS = 272
    a(f"""
    s_lshr_b32 s30, s21, 2
    s_lshl_b32 s30, s30, 21
    s_add_u32 s30, s30, {WS_B}
    s_add_u32 s32, s44, s30
    s_addc_u32 s33, s45, 0
    s_mov_b32 s34, {512*4096}
    s_mov_b32 s35, 0x00020000
    s_mul_i32 s36, s{S_WAVE}, {64*RS}
    v_mul_u32_u24 v{t+2}, {RS}, v{t}
    v_lshlrev_b32 v{t+3}, 3, v{t+1}
    v_add3_u32 v{t+2}, v{t+2}, v{t+3}, s36
    s_cmp_ge_u32 s21, 4
    s_cselect_b32 s31, 0x80008000, 0
    s_barrier
    """)
    k = 0
    for (b, moff, noff) in C.quads():
        r = t + 4 + 2 * (k % 4)
        k += 1
        a(f"v_cvt_pk_bf16_f32 v{r}, v{b}, v{b+1}")
        a(f"v_cvt_pk_bf16_f32 v{r+1}, v{b+2}, v{b+3}")
        a(f"v_xor_b32 v{r}, s31, v{r}")
        a(f"v_xor_b32 v{r+1}, s31, v{r+1}")
        a(f"ds_write_b64 v{t+2}, v[{r}:{r+1}] offset:{noff*RS + moff*2}")
    a(f"""
    v_lshrrev_b32 v{t+3}, 4, v1
    v_and_b32 v{t+4}, 15, v1
    v_lshlrev_b32 v{t+4}, 4, v{t+4}
    v_mul_u32_u24 v{t+5}, {RS}, v{t+3}
    v_add3_u32 v{t+5}, v{t+5}, v{t+4}, s36
    v_lshlrev_b32 v{t+3}, 12, v{t+3}
    v_add_u32 v{t+3}, v{t+3}, v{t+4}
    s_lshl_b32 s30, s29, 6
    s_add_u32 s30, s30, s25
    s_lshl_b32 s30, s30, 12
    s_lshl_b32 s37, s28, 7
    s_add_u32 s37, s37, s24
    s_lshl_b32 s37, s37, 1
    s_add_u32 s30, s30, s37
    s_waitcnt lgkmcnt(0)
    """)
    for i in range(16):
        a(f"ds_read_b128 v[{C.V_ACC+4*i}:{C.V_ACC+4*i+3}], v{t+5} offset:{i*4*RS}")
    for i in range(16):
        a(f"s_waitcnt lgkmcnt({15-i})")
        a(f"buffer_store_dwordx4 v[{C.V_ACC+4*i}:{C.V_ACC+4*i+3}], v{t+3}, s[32:35], s30 offen")
        a("s_add_u32 s30, s30, 0x4000")
    if OPT.get("stamp"):
        stamp(a, 3)
        a("s_waitcnt vmcnt(0)")
        stamp(a, 4)
        stamp_flush(a, "L_g1", t + 4)
    a("s_endpgm")
    a.label("L_g1_epi_ffn")
    srd(a, 32, 44, WS_H, 2048 * 4096)
    c0 = -2.0 * 0.7978845608028654 * 1.4426950408889634
    c1 = c0 * 0.044715
    RS2 = 144
    a(f"""
    s_mul_i32 s36, s{S_WAVE}, {64*RS2}
    v_mul_u32_u24 v{t+2}, {RS2}, v{t}
    v_lshlrev_b32 v{t+3}, 3, v{t+1}
    v_add3_u32 v{t+2}, v{t+2}, v{t+3}, s36
    v_mov_b32 v{t+4}, 0x{f32bits(c0):08x}
    v_mov_b32 v{t+5}, 0x{f32bits(c0):08x}
    v_mov_b32 v{t+10}, 0x{f32bits(c1):08x}
    v_mov_b32 v{t+11}, 0x{f32bits(c1):08x}
    s_barrier
    """)
    k = 0
    qd = {(m, n): r for (r, m, n) in C.quads()}
    for (G0, moff, noff) in C.quads():
        if moff % 64 >= 32:
            continue
        U0 = qd[(moff + 32, noff)]
        foff = (moff // 64) * 32 + moff % 64
        for _once in range(1):
            for _once2 in range(1):
                g = 4 + 8 * (k % 2)
                o = t + 6 + 2 * (k % 2)
                k += 1
                for p in range(2):
                    a(f"v_pk_mul_f32 v[{g+2*p}:{g+2*p+1}], v[{G0+2*p}:{G0+2*p+1}], v[{G0+2*p}:{G0+2*p+1}]")
                for p in range(2):
                    a(f"v_pk_fma_f32 v[{g+2*p}:{g+2*p+1}], v[{g+2*p}:{g+2*p+1}], v[{t+10}:{t+11}], v[{t+4}:{t+5}]")
                for p in range(2):
                    a(f"v_pk_mul_f32 v[{g+2*p}:{g+2*p+1}], v[{g+2*p}:{g+2*p+1}], v[{G0+2*p}:{G0+2*p+1}]")
                for r in range(4):
                    a(f"v_exp_f32 v{g+r}, v{g+r}")
                for p in range(2):
                    a(f"v_pk_mul_f32 v[{g+4+2*p}:{g+4+2*p+1}], v[{G0+2*p}:{G0+2*p+1}], v[{U0+2*p}:{U0+2*p+1}]")
                for p in range(2):
                    a(f"v_pk_add_f32 v[{g+2*p}:{g+2*p+1}], v[{g+2*p}:{g+2*p+1}], 1.0 op_sel_hi:[1,0]")
                for r in range(4):
                    a(f"v_rcp_f32 v{g+r}, v{g+r}")
                a("s_nop 0")
                for p in range(2):
                    a(f"v_pk_mul_f32 v[{g+2*p}:{g+2*p+1}], v[{g+2*p}:{g+2*p+1}], v[{g+4+2*p}:{g+4+2*p+1}]")
                a(f"v_cvt_pk_bf16_f32 v{o}, v{g}, v{g+1}")
                a(f"v_cvt_pk_bf16_f32 v{o+1}, v{g+2}, v{g+3}")
                a(f"ds_write_b64 v{t+2}, v[{o}:{o+1}] offset:{noff*RS2 + foff*2}")
    a(f"""
    v_lshrrev_b32 v{t+3}, 3, v1
    v_and_b32 v{t+4}, 7, v1
    v_lshlrev_b32 v{t+4}, 4, v{t+4}
    v_mul_u32_u24 v{t+5}, {RS2}, v{t+3}
    v_add3_u32 v{t+5}, v{t+5}, v{t+4}, s36
    v_lshlrev_b32 v{t+3}, 12, v{t+3}
    v_add_u32 v{t+3}, v{t+3}, v{t+4}
    s_lshl_b32 s30, s29, 6
    s_add_u32 s30, s30, s25
    s_lshl_b32 s30, s30, 12
    s_lshl_b32 s37, s28, 7
    s_add_u32 s37, s37, s24
    s_add_u32 s30, s30, s37
    s_waitcnt lgkmcnt(0)
    """)
    for i in range(8):
        a(f"ds_read_b128 v[{C.V_ACC+4*i}:{C.V_ACC+4*i+3}], v{t+5} offset:{i*8*RS2}")
    for i in range(8):
        a(f"s_waitcnt lgkmcnt({7-i})")
        a(f"buffer_store_dwordx4 v[{C.V_ACC+4*i}:{C.V_ACC+4*i+3}], v{t+3}, s[32:35], s30 offen")
        a("s_add_u32 s30, s30, 0x8000")
    if OPT.get("stamp"):
        stamp(a, 3)
        a("s_waitcnt vmcnt(0)")
        stamp(a, 4)
        stamp_flush(a, "L_g1", t + 6)
    a("s_endpgm")
    a.label("L_g1_pf")
    a(f"""
    s_load_dwordx4 s[48:51], s[0:1], {KA_WSRE}
    v_and_b32 v1, 63, v0
    v_lshrrev_b32 v2, 6, v0
    s_nop 0
    v_readfirstlane_b32 s3, v2
    s_sub_u32 s38, s2, 240
    s_lshl_b32 s38, s38, 3
    s_nop 2
    s_add_u32 s38, s38, s3
    s_lshl_b32 s38, s38, 16
    v_lshlrev_b32 v3, 4, v1
    s_mov_b32 s39, 0
    s_waitcnt lgkmcnt(0)
    """)
    srd(a, 52, 48, 0, 2048 * 4096)
    srd(a, 56, 50, 0, 2048 * 4096)
    a.label("L_g1_pfl")
    for i in range(4):
        a(f"buffer_load_dwordx4 v[{4+8*i}:{7+8*i}], v3, s[52:55], s38 offen offset:{1024*i}")
        a(f"buffer_load_dwordx4 v[{8+8*i}:{11+8*i}], v3, s[56:59], s38 offen offset:{1024*i}")
    a("""
    s_add_u32 s38, s38, 4096
    s_add_u32 s39, s39, 1
    s_cmp_lt_u32 s39, 16
    s_cbranch_scc1 L_g1_pfl
    """)
    a.label("L_g1_end")
    a("s_endpgm")
    return kernel_desc(name, C.V_TMP + 24)


G2 = None
G2_WGS = 256


def gen_gemm2(a):
    global G2
    MT = OPT.get("g2mt", 2)
    SP = 2 * MT
    LSP = SP.bit_length() - 1
    C = G2 = Core(MT, 4 if MT == 2 else 3)
    name = "gemm2_kernel"
    kernel_begin(a, name)
    if MT == 2:
        MAP = """
        s_and_b32 s23, s2, 3
        s_lshr_b32 s20, s2, 2
        s_and_b32 s20, s20, 1
        s_lshl_b32 s20, s20, 3
        s_lshr_b32 s21, s2, 3
        s_and_b32 s22, s21, 7
        s_add_u32 s20, s20, s22
        s_lshr_b32 s22, s21, 3
        s_lshl_b32 s28, s20, 2
        s_add_u32 s28, s28, s22
        """
    else:
        MAP = """
        s_and_b32 s23, s2, 7
        s_lshr_b32 s21, s2, 3
        s_and_b32 s20, s21, 15
        s_lshr_b32 s22, s21, 4
        s_mov_b32 s28, s21
        """
    a(f"""
    s_cmp_ge_u32 s2, {G2_WGS}
    s_cbranch_scc1 L_g2_end
    {"s_memrealtime s[74:75]" if OPT.get("stamp") else ""}
    s_load_dwordx4 s[40:43], s[0:1], {KA_WSRE}
    s_load_dwordx2 s[44:45], s[0:1], {KA_WS}
    s_load_dwordx2 s[48:49], s[0:1], {KA_X}
    s_load_dwordx4 s[52:55], s[0:1], {KA_OUT}
    {MAP}
    s_mul_i32 s{S_JL}, s23, 86
    s_add_u32 s{S_JEND}, s{S_JL}, 86
    s_lshr_b32 s{S_JL}, s{S_JL}, {LSP}
    s_lshr_b32 s{S_JEND}, s{S_JEND}, {LSP}
    s_sub_u32 s{S_NEND}, s{S_JEND}, s{S_JL}
    s_mul_i32 s24, s22, {C.BM}
    s_lshl_b32 s25, s20, 7
    s_waitcnt lgkmcnt(0)
    """)
    srd(a, S_SRDP, 44, WS_B, 3 * 512 * 4096)
    a(f"""
    s_add_u32 s46, s44, {WS_H}
    s_addc_u32 s47, s45, 0
    s_mov_b32 s{S_SRDQ+2}, {2048*4096}
    s_mov_b32 s{S_SRDQ+3}, 0x00020000
    """)

    def step_setup(a):
        a(f"""
        s_lshr_b32 s26, s{S_JL}, 5
        s_and_b32 s{S_OFFQ}, s{S_JL}, 31
        s_lshl_b32 s{S_OFFQ}, s{S_OFFQ}, 7
        s_lshl_b32 s27, s26, 21
        s_add_u32 s{S_OFFP}, s{S_OFFQ}, s27
        s_cmp_eq_u32 s26, 0
        s_cselect_b64 s[{S_SRDQ}:{S_SRDQ+1}], s[40:41], s[42:43]
        s_cmp_ge_u32 s26, 2
        s_cselect_b64 s[{S_SRDQ}:{S_SRDQ+1}], s[46:47], s[{S_SRDQ}:{S_SRDQ+1}]
        s_add_u32 s{S_JL}, s{S_JL}, 1
        """)

    C.body(a, "L_g2", step_setup, 24, 25, 4096, 4096)
    t = C.V_TMP
    X = t + 20
    QOFF = [(n % 32) * 1024 + (m % 32) * 2 for (r, m, n) in sorted(C.quads()) if r < C.V_ACC + 16]
    assert len(QOFF) == 4 and max(QOFF) < 32768
    srd(a, 32, 44, WS_PART, 256 * SP * 8192)
    srd(a, 56, 44, WS_FLAG, 16384)
    srd(a, 60, 48, 0, 2048 * 1024)
    srd(a, 64, 52, 0, 2048 * 1024)
    a(f"""
    s_lshl_b32 s31, s{S_WAVE}, 11
    v_lshlrev_b32 v{t}, 4, v1
    s_and_b32 s36, s{S_WAVE}, 1
    s_lshl_b32 s36, s36, 1
    s_and_b32 s37, s23, 1
    s_add_u32 s36, s36, s37
    s_lshl_b32 s36, s36, 5
    s_add_u32 s36, s36, s25
    s_lshr_b32 s37, s{S_WAVE}, 1
    s_mul_i32 s37, s37, {MT}
    s_lshr_b32 s38, s23, 1
    s_add_u32 s37, s37, s38
    s_lshl_b32 s37, s37, 5
    s_add_u32 s37, s37, s24
    v_and_b32 v{t+1}, {C.LN_MASK}, v1
    v_add_u32 v{t+1}, s36, v{t+1}
    v_lshlrev_b32 v{t+1}, 10, v{t+1}
    v_lshrrev_b32 v{t+2}, {C.LM_SHIFT}, v1
    v_lshlrev_b32 v{t+2}, 2, v{t+2}
    v_add_u32 v{t+2}, s37, v{t+2}
    v_lshlrev_b32 v{t+2}, 1, v{t+2}
    v_add_u32 v{t+1}, v{t+1}, v{t+2}
    s_mov_b32 s36, 0
    s_mov_b32 s37, 0x4000
    """)
    for tl in range(SP):
        a(f"""
        s_cmp_eq_u32 s23, {tl}
        s_cbranch_scc1 L_g2_pub{tl}
        s_lshl_b32 s30, s28, {LSP}
        s_add_u32 s30, s30, {tl}
        s_lshl_b32 s30, s30, {LSP}
        s_add_u32 s30, s30, s23
        s_lshl_b32 s30, s30, 13
        s_add_u32 s30, s30, s31
        """)
        b = C.V_ACC + tl * 16
        r = t + 4 + 8 * (tl & 1)
        for i in range(8):
            a(f"v_cvt_pk_bf16_f32 v{r+i}, v{b+2*i}, v{b+2*i+1}")
        if OPT.get("sent", 0):
            for i in range(8):
                a(f"v_min_u32 v{r+i}, -2, v{r+i}")
        a(f"buffer_store_dwordx4 v[{r}:{r+3}], v{t}, s[32:35], s30 offen sc1")
        a(f"buffer_store_dwordx4 v[{r+4}:{r+7}], v{t}, s[32:35], s30 offen offset:1024 sc1")
        a.label(f"L_g2_pub{tl}")
    if OPT.get("sent", 0):
        stamp(a, 3)
        for q in range(4):
            a(f"buffer_load_dwordx2 v[{X+2*q}:{X+2*q+1}], v{t+1}, s[60:63], s{36 + QOFF[q] // 16384} offen offset:{QOFF[q] % 16384}")
        stamp(a, 4)
    else:
        a("s_waitcnt vmcnt(0)")
        stamp(a, 3)
        for q in range(4):
            a(f"buffer_load_dwordx2 v[{X+2*q}:{X+2*q+1}], v{t+1}, s[60:63], s{36 + QOFF[q] // 16384} offen offset:{QOFF[q] % 16384}")
        a(f"""
        s_barrier
        s_cmp_lg_u32 s{S_WAVE}, 0
        s_cbranch_scc1 L_g2_wait
        s_lshl_b32 s29, s28, 8
        v_mov_b32 v{t+2}, 1
        v_mov_b32 v{t+3}, 0
        s_mov_b64 s[68:69], exec
        s_mov_b64 exec, 1
        buffer_atomic_add v{t+2}, v{t+3}, s[56:59], s29 offen
        """)
        a.label("L_g2_spin")
        a(f"""
        buffer_load_dword v{t+2}, v{t+3}, s[56:59], s29 offen sc1
        s_waitcnt vmcnt(0)
        v_readfirstlane_b32 s30, v{t+2}
        s_nop 3
        s_cmp_ge_u32 s30, {SP}
        s_cbranch_scc1 L_g2_spun
        s_sleep 1
        s_branch L_g2_spin
        """)
        a.label("L_g2_spun")
        a("s_mov_b64 exec, s[68:69]")
        a.label("L_g2_wait")
        a("s_barrier")
        stamp(a, 4)
    a(f"""
    s_lshl_b32 s38, s28, {LSP}
    s_add_u32 s38, s38, s23
    s_lshl_b32 s38, s38, {LSP}
    """)
    for tl in range(SP - 1):
        a(f"s_cmp_eq_u32 s23, {tl}")
        a(f"s_cbranch_scc1 L_g2_fin{tl}")
    for tl in [SP - 1] + list(range(SP - 1)):
        if tl != SP - 1:
            a.label(f"L_g2_fin{tl}")
        b = C.V_ACC + tl * 16
        if OPT.get("sent", 0):
            a.label(f"L_g2_poll{tl}")
        for i in range(1, SP):
            a(f"""
            s_add_u32 s30, s38, {(tl + i) % SP}
            s_lshl_b32 s30, s30, 13
            s_add_u32 s30, s30, s31
            """)
            r = C.V_ACC + ((tl + i) % SP) * 16
            a(f"buffer_load_dwordx4 v[{r}:{r+3}], v{t}, s[32:35], s30 offen sc1")
            a(f"buffer_load_dwordx4 v[{r+4}:{r+7}], v{t}, s[32:35], s30 offen offset:1024 sc1")
        if OPT.get("sent", 0):
            a("s_waitcnt vmcnt(0)")
            first = True
            for i in range(1, SP):
                r = C.V_ACC + ((tl + i) % SP) * 16
                for j in range(0, 8, 2):
                    if first:
                        a(f"v_and_b32 v{t+2}, v{r+j}, v{r+j+1}") if False else None
                        a(f"v_max_u32 v{t+2}, v{r+j}, v{r+j+1}")
                        first = False
                    else:
                        a(f"v_max3_u32 v{t+2}, v{r+j}, v{r+j+1}, v{t+2}")
            a(f"""
            v_cmp_eq_u32 vcc, -1, v{t+2}
            s_nop 1
            s_cmp_lg_u64 vcc, 0
            s_cbranch_scc0 L_g2_ok{tl}
            s_sleep 1
            s_branch L_g2_poll{tl}
            """)
            a.label(f"L_g2_ok{tl}")
        a(f"s_waitcnt vmcnt({2*(SP-1)})")
        for i in range(8):
            a(f"v_lshlrev_b32 v{t+2}, 16, v{X+i}")
            a(f"v_and_b32 v{t+3}, 0xffff0000, v{X+i}")
            a(f"v_add_f32 v{b+2*i}, v{b+2*i}, v{t+2}")
            a(f"v_add_f32 v{b+2*i+1}, v{b+2*i+1}, v{t+3}")
        for src in range(SP - 1):
            a(f"s_waitcnt vmcnt({2*(SP-2-src)})")
            for i in range(8):
                rr = C.V_ACC + ((tl + 1 + src) % SP) * 16 + i
                a(f"v_lshlrev_b32 v{t+2}, 16, v{rr}")
                a(f"v_and_b32 v{t+3}, 0xffff0000, v{rr}")
                a(f"v_add_f32 v{b+2*i}, v{b+2*i}, v{t+2}")
                a(f"v_add_f32 v{b+2*i+1}, v{b+2*i+1}, v{t+3}")
        for q in range(4):
            a(f"v_cvt_pk_bf16_f32 v{X+2*q}, v{b+4*q}, v{b+4*q+1}")
            a(f"v_cvt_pk_bf16_f32 v{X+2*q+1}, v{b+4*q+2}, v{b+4*q+3}")
            a(f"buffer_store_dwordx2 v[{X+2*q}:{X+2*q+1}], v{t+1}, s[64:67], s{36 + QOFF[q] // 16384} offen offset:{QOFF[q] % 16384}")
        if OPT.get("stamp"):
            a("s_waitcnt vmcnt(0)")
            stamp(a, 5)
            stamp_flush(a, "L_g2", t + 2)
        a("s_endpgm")
    a.label("L_g2_end")
    a("s_endpgm")
    return kernel_desc(name, X + 8)


def main():
    global ARGS
    ARGS = [x for x in sys.argv[1:] if "=" not in x]
    for x in sys.argv[1:]:
        if "=" in x:
            k, v = x.split("=")
            OPT[k] = int(v)
    hdr = open("cdna_kernels/" + NAME + ".s.ref").read().split("\n")
    top = [l for l in hdr if l.startswith(";") and "@launch" not in l and "Override" not in l and "grid=ceil" not in l]
    a = Asm()
    descs = []
    a.raw('.amdgcn_target "amdgcn-amd-amdhsa--gfx950"')
    a.raw(".text")
    descs.append(gen_prep(a))
    descs.append(gen_gemm1(a))
    descs.append(gen_gemm2(a))
    out = "\n".join(top) + "\n"
    out += f"; @launch kernel=prep_kernel grid=({PREP_WGS},1,1) block=(256,1,1) lds=0\n"
    out += f"; @launch kernel=gemm1_kernel grid=({G1_WGS},1,1) block=(512,1,1) lds={G1.LDS}\n"
    out += f"; @launch kernel=gemm2_kernel grid=({G2_WGS},1,1) block=(512,1,1) lds={G2.LDS}\n"
    if OPT.get("report"):
        out += f"; @launch kernel=report_kernel grid=(1,1,1) block=(64,1,1) lds=0\n"
        kernel_begin(a, "report_kernel")
        a(f"""
        s_cmp_ge_u32 s2, 1
        s_cbranch_scc1 L_rep_end
        s_load_dwordx4 s[4:7], s[0:1], {KA_DBG}
        s_waitcnt lgkmcnt(0)
        """)
        srd(a, 8, 4, 0, 256)
        srd(a, 12, 6, 59 << 20, 8 << 20)
        a("""
        v_lshlrev_b32 v1, 9, v0
        v_mov_b32 v2, 0
        buffer_load_dword v10, v2, s[12:15], 0 offen
        """)
        a(f"s_mov_b32 s16, {3 << 20}")
        a(f"s_mov_b32 s17, {4 << 20}")
        for k in range(5):
            a(f"buffer_load_dword v{11+k}, v1, s[12:15], s16 offen offset:{8*k}")
        for k in range(6):
            a(f"buffer_load_dword v{16+k}, v1, s[12:15], s17 offen offset:{8*k}")
        for k, task in enumerate((2040, 3450, 4860)):
            a(f"buffer_load_dword v{22+k}, v2, s[12:15], 0 offen offset:0") if False else None
            a(f"s_mov_b32 s18, {32768 + task*4}")
            a(f"buffer_load_dword v{22+k}, v2, s[12:15], s18 offen")
        for k, task in enumerate((2040, 4860)):
            a(f"s_mov_b32 s18, {task*4}")
            a(f"buffer_load_dword v{25+k}, v2, s[12:15], s18 offen")
        a("s_waitcnt vmcnt(0)")
        for k in range(16):
            a(f"v_sub_u32 v{11+k}, v{11+k}, v10")
        a("s_mov_b64 exec, 1")
        for k in range(16):
            a(f"buffer_store_dword v{11+k}, v2, s[8:11], 0 offen offset:{4*k}")
        a.label("L_rep_end")
        a("s_endpgm")
        descs.append(kernel_desc("report_kernel", 32))
    for i in range(OPT.get("dummy", 0)):
        out += f"; @launch kernel=dummy_kernel grid=(1,1,1) block=(64,1,1) lds=0\n"
    if OPT.get("dummy", 0):
        kernel_begin(a, "dummy_kernel")
        a("s_endpgm")
        descs.append(kernel_desc("dummy_kernel", 8))
    out += a.text()
    out += '.section .rodata,"a"\n'
    for d in descs:
        out += ".p2align 6\n" + d
    path = ARGS[0] if ARGS else "cdna_kernels/" + NAME + ".s"
    open(path, "w").write(out)


if __name__ == "__main__":
    main()
```

```python
import struct
import sys

NAME = "parallel_sum__spectral_fnet__geglu_ffn__prompt"
OPT = {}

WS_XN = 0
WS_WGU = 2 << 20
WS_B = 8 << 20
WS_H = 16 << 20
WS_PART = 32 << 20
WS_FLAG = 30 << 20
WS_SIZE = 268435456

KA_X, KA_WSRE, KA_WSIM, KA_WDRE, KA_WDIM, KA_BX, KA_WG, KA_WU, KA_WDN, KA_OUT, KA_DBG, KA_WS = [8 * i for i in range(12)]


def f32bits(x):
    return struct.unpack("<I", struct.pack("<f", x))[0]


class Asm:
    def __init__(self):
        self.lines = []

    def __call__(self, s):
        for ln in s.strip("\n").split("\n"):
            self.lines.append("    " + ln.strip())

    def label(self, s):
        self.lines.append(s + ":")

    def raw(self, s):
        self.lines.append(s)

    def text(self):
        return "\n".join(self.lines) + "\n"


def kernel_begin(a, name):
    a.raw(f".globl {name}")
    a.raw(".p2align 8")
    a.raw(f".type {name},@function")
    a.label(name)


def kernel_desc(name, vgpr, sgpr=96):
    acc = (vgpr + 3) // 4 * 4
    return f""".amdhsa_kernel {name}
  .amdhsa_next_free_vgpr {vgpr}
  .amdhsa_next_free_sgpr {sgpr}
  .amdhsa_accum_offset {acc}
  .amdhsa_group_segment_fixed_size 0
  .amdhsa_kernarg_size 96
  .amdhsa_user_sgpr_count 2
  .amdhsa_user_sgpr_kernarg_segment_ptr 1
  .amdhsa_system_sgpr_workgroup_id_x 1
  .amdhsa_float_denorm_mode_32 3
.end_amdhsa_kernel
"""


def srd(a, d, base, off, size):
    if off:
        a(f"s_add_u32 s{d}, s{base}, {off}")
        a(f"s_addc_u32 s{d+1}, s{base+1}, 0")
    else:
        a(f"s_mov_b32 s{d}, s{base}")
        a(f"s_mov_b32 s{d+1}, s{base+1}")
    a(f"s_mov_b32 s{d+2}, {size}")
    a(f"s_mov_b32 s{d+3}, 0x00020000")


N_LN = 2048
N_WGU = 22 * 64
N_WD = 8 * 176
N_PF = 0
PREP_WGS = 0


def gen_prep(a):
    global N_PF, PREP_WGS
    N_PF = 1024 if OPT.get("pf", 0) == 1 else 0
    PREP_WGS = (N_LN + N_WGU + N_WD + N_PF) // 4
    name = "prep_kernel"
    kernel_begin(a, name)
    PSTAMP = ""
    if OPT.get("stamp"):
        PSTAMP = f"""
    s_memrealtime s[40:41]
    s_add_u32 s44, s14, {59 << 20}
    s_addc_u32 s45, s15, 0
    s_mov_b32 s46, 65536
    s_mov_b32 s47, 0x00020000
    s_lshl_b32 s48, s16, 2
    s_add_u32 s49, s48, 32768
    s_waitcnt lgkmcnt(0)
    v_mov_b32 v30, s40
    v_mov_b32 v31, 0
    buffer_store_dword v30, v31, s[44:47], s48 offen
    """
    a(f"""
    s_cmp_ge_u32 s2, {PREP_WGS}
    s_cbranch_scc1 L_prep_end
    s_load_dwordx2 s[4:5], s[0:1], {KA_X}
    s_load_dwordx4 s[8:11], s[0:1], {KA_WG}
    s_load_dwordx2 s[12:13], s[0:1], {KA_WDN}
    s_load_dwordx2 s[14:15], s[0:1], {KA_WS}
    v_lshrrev_b32 v1, 6, v0
    v_and_b32 v2, 63, v0
    s_nop 0
    v_readfirstlane_b32 s3, v1
    s_lshl_b32 s16, s2, 2
    s_nop 3
    s_add_u32 s16, s16, s3
    s_waitcnt lgkmcnt(0)
    {PSTAMP}
    s_cmp_lt_u32 s16, {N_PF}
    s_cbranch_scc1 L_prep_pf
    s_sub_u32 s16, s16, {N_PF}
    s_cmp_ge_u32 s16, {N_LN}
    s_cbranch_scc1 L_prep_wgu
    """)
    srd(a, 20, 4, 0, 2048 * 1024)
    srd(a, 24, 14, WS_XN, 2048 * 1024)
    a("""
    s_lshl_b32 s17, s16, 10
    v_lshlrev_b32 v3, 4, v2
    buffer_load_dwordx4 v[4:7], v3, s[20:23], s17 offen
    s_cmp_lg_u32 s16, 0
    s_cbranch_scc1 L_prep_noflag
    """)
    srd(a, 28, 14, WS_FLAG, 16384)
    a("""
    v_mov_b32 v8, 0
    v_mov_b32 v9, 0
    v_mov_b32 v10, 0
    v_mov_b32 v11, 0
    s_mov_b32 s32, 0
    """)
    for i in range(16):
        a(f"buffer_store_dwordx4 v[8:11], v3, s[28:31], s32 offen")
        a("s_add_u32 s32, s32, 1024")
    a.label("L_prep_noflag")
    a("""
    v_lshlrev_b32 v30, 2, v2
    v_xor_b32 v31, 4, v30
    v_xor_b32 v32, 8, v30
    v_xor_b32 v33, 16, v30
    v_xor_b32 v34, 32, v30
    v_xor_b32 v35, 64, v30
    v_xor_b32 v36, 128, v30
    s_waitcnt vmcnt(0)
    """)
    for i in range(4):
        a(f"v_lshlrev_b32 v{8+2*i}, 16, v{4+i}")
        a(f"v_and_b32 v{9+2*i}, 0xffff0000, v{4+i}")
    a("""
    v_add_f32 v16, v8, v9
    v_add_f32 v17, v10, v11
    v_add_f32 v18, v12, v13
    v_add_f32 v19, v14, v15
    v_add_f32 v16, v16, v17
    v_add_f32 v18, v18, v19
    v_add_f32 v16, v16, v18
    """)
    for r in range(31, 37):
        a(f"""
        ds_bpermute_b32 v17, v{r}, v16
        s_waitcnt lgkmcnt(0)
        v_add_f32 v16, v16, v17
        """)
    a(f"v_mul_f32 v16, 0x{f32bits(1.0/512):08x}, v16")
    for i in range(8):
        a(f"v_sub_f32 v{20+i}, v{8+i}, v16")
    a("v_mul_f32 v17, v20, v20")
    for i in range(1, 8):
        a(f"v_fmac_f32 v17, v{20+i}, v{20+i}")
    for r in range(31, 37):
        a(f"""
        ds_bpermute_b32 v18, v{r}, v17
        s_waitcnt lgkmcnt(0)
        v_add_f32 v17, v17, v18
        """)
    a(f"""
    v_mul_f32 v17, 0x{f32bits(1.0/512):08x}, v17
    v_cvt_pk_bf16_f32 v18, v16, v17
    v_lshlrev_b32 v16, 16, v18
    v_and_b32 v17, 0xffff0000, v18
    v_add_f32 v17, 0x{f32bits(1e-5):08x}, v17
    v_cvt_pk_bf16_f32 v18, v17, v17
    v_lshlrev_b32 v17, 16, v18
    v_sqrt_f32 v17, v17
    s_nop 0
    v_cvt_pk_bf16_f32 v18, v17, v17
    v_lshlrev_b32 v17, 16, v18
    v_rcp_f32 v19, v17
    """)
    for i in range(8):
        a(f"v_sub_f32 v{20+i}, v{8+i}, v16")
    for i in range(4):
        a(f"v_cvt_pk_bf16_f32 v{4+i}, v{20+2*i}, v{21+2*i}")
    for i in range(4):
        a(f"v_lshlrev_b32 v{8+2*i}, 16, v{4+i}")
        a(f"v_and_b32 v{9+2*i}, 0xffff0000, v{4+i}")
    for i in range(8):
        a(f"v_mul_f32 v{20+i}, v{8+i}, v19")
    for i in range(8):
        a(f"v_fma_f32 v{8+i}, -v{20+i}, v17, v{8+i}")
    for i in range(8):
        a(f"v_fmac_f32 v{20+i}, v{8+i}, v19")
    for i in range(4):
        a(f"v_cvt_pk_bf16_f32 v{4+i}, v{20+2*i}, v{21+2*i}")
    a("""
    buffer_store_dwordx4 v[4:7], v3, s[24:27], s17 offen
    """)
    if OPT.get("stamp"):
        a("""
        s_waitcnt vmcnt(0)
        s_memrealtime s[40:41]
        s_waitcnt lgkmcnt(0)
        v_mov_b32 v30, s40
        v_mov_b32 v31, 0
        buffer_store_dword v30, v31, s[44:47], s49 offen
        """)
    a("s_endpgm")
    a.label("L_prep_wgu")
    a(f"""
    s_cmp_ge_u32 s16, {N_LN + N_WGU}
    s_cbranch_scc1 L_prep_wd
    s_sub_u32 s16, s16, {N_LN}
    s_lshr_b32 s17, s16, 6
    s_and_b32 s18, s16, 63
    """)
    srd(a, 20, 8, 0, 512 * 2752)
    srd(a, 24, 10, 0, 512 * 2752)
    srd(a, 28, 14, WS_WGU, 2816 * 1024)
    a("""
    s_lshl_b32 s19, s17, 6
    v_add_u32 v3, s19, v2
    v_lshlrev_b32 v4, 1, v3
    s_mul_i32 s32, s18, 22016
    """)
    for j in range(8):
        a(f"buffer_load_ushort v{16+j}, v4, s[20:23], s32 offen")
        a(f"buffer_load_ushort v{24+j}, v4, s[24:27], s32 offen")
        if j < 7:
            a("s_add_u32 s32, s32, 2752")
    a("""
    v_lshrrev_b32 v5, 5, v3
    v_lshlrev_b32 v5, 6, v5
    v_and_b32 v6, 31, v3
    v_add_u32 v5, v5, v6
    v_lshlrev_b32 v5, 10, v5
    s_lshl_b32 s33, s18, 4
    v_mov_b32 v7, 1376
    v_cmp_gt_u32 vcc, v7, v3
    s_waitcnt vmcnt(0)
    """)
    for j in range(8):
        a(f"v_lshl_or_b32 v{8+j}, v{17+2*j}, 16, v{16+2*j}")
    for j in range(8):
        a(f"v_cndmask_b32 v{8+j}, 0, v{8+j}, vcc")
    a("""
    buffer_store_dwordx4 v[8:11], v5, s[28:31], s33 offen
    s_add_u32 s33, s33, 32768
    buffer_store_dwordx4 v[12:15], v5, s[28:31], s33 offen
    """)
    if OPT.get("stamp"):
        a("""
        s_waitcnt vmcnt(0)
        s_memrealtime s[40:41]
        s_waitcnt lgkmcnt(0)
        v_mov_b32 v30, s40
        v_mov_b32 v31, 0
        buffer_store_dword v30, v31, s[44:47], s49 offen
        """)
    a("s_endpgm")
    a.label("L_prep_wd")
    a(f"""
    s_sub_u32 s16, s16, {N_LN + N_WGU}
    s_mul_hi_u32 s17, s16, {((1 << 32) + 175) // 176}
    s_mul_i32 s18, s17, 176
    s_sub_u32 s18, s16, s18
    """)
    srd(a, 20, 12, 0, 1376 * 1024)
    srd(a, 28, 14, WS_B + (4 << 20), 512 * 4096)
    a("""
    s_lshl_b32 s19, s17, 6
    v_add_u32 v3, s19, v2
    v_lshlrev_b32 v4, 1, v3
    s_lshl_b32 s32, s18, 13
    """)
    for j in range(8):
        a(f"buffer_load_ushort v{16+j}, v4, s[20:23], s32 offen")
        if j < 7:
            a("s_add_u32 s32, s32, 1024")
    a("""
    v_lshlrev_b32 v5, 12, v3
    s_lshl_b32 s33, s18, 4
    s_waitcnt vmcnt(0)
    """)
    for j in range(4):
        a(f"v_lshl_or_b32 v{8+j}, v{17+2*j}, 16, v{16+2*j}")
    a("""
    buffer_store_dwordx4 v[8:11], v5, s[28:31], s33 offen
    """)
    if OPT.get("stamp"):
        a("""
        s_waitcnt vmcnt(0)
        s_memrealtime s[40:41]
        s_waitcnt lgkmcnt(0)
        v_mov_b32 v30, s40
        v_mov_b32 v31, 0
        buffer_store_dword v30, v31, s[44:47], s49 offen
        """)
    a("s_endpgm")
    a.label("L_prep_pf")
    a(f"""
    s_load_dwordx4 s[20:23], s[0:1], {KA_WSRE}
    s_lshl_b32 s17, s16, 13
    v_lshlrev_b32 v3, 4, v2
    s_waitcnt lgkmcnt(0)
    """)
    srd(a, 24, 20, 0, 2048 * 4096)
    srd(a, 28, 22, 0, 2048 * 4096)
    for i in range(8):
        a(f"buffer_load_dwordx4 v[{4+4*(i%4)}:{7+4*(i%4)}], v3, s[24:27], s17 offen")
        a(f"buffer_load_dwordx4 v[{20+4*(i%4)}:{23+4*(i%4)}], v3, s[28:31], s17 offen")
        a("s_add_u32 s17, s17, 1024")
    a.label("L_prep_end")
    a("s_endpgm")
    return kernel_desc(name, 40)


S_SRDP = 4
S_SRDQ = 8
S_OFFP = 12
S_OFFQ = 13
S_WOFF = 14
S_N = 15
S_NEND = 16
S_JL = 17
S_JEND = 18
S_WAVE = 19
S_WOFFQ = 39


def stamp(a, k):
    if OPT.get("stamp"):
        a(f"s_memrealtime s[{74+2*k}:{75+2*k}]")


def stamp_flush(a, pfx, T, n=8):
    if OPT.get("stamp"):
        a("s_waitcnt lgkmcnt(0)")
        srd(a, 68, 44, (62 << 20) + (0 if pfx == "L_g1" else (1 << 20)), 1 << 20)
        a(f"""
        s_lshl_b32 s72, s2, 3
        s_add_u32 s72, s72, s{S_WAVE}
        s_lshl_b32 s72, s72, 6
        v_mov_b32 v{T}, 0
        """)
        for i in range(2 * n):
            a(f"v_mov_b32 v{T+1}, s{74+i}")
            a(f"buffer_store_dword v{T+1}, v{T}, s[68:71], s72 offen offset:{4*i}")


class Core:
    def __init__(self, MT, NS):
        self.MT, self.NS = MT, NS
        self.BM = 64 * MT
        self.PSZ = self.BM * 128
        self.QSZ = 16384
        self.QBASE = NS * self.PSZ
        self.LDS = self.QBASE + NS * self.QSZ
        self.NPI = self.BM // 32
        self.NDMA = self.NPI + 4
        self.V_LDP = 4
        self.V_LDQ = 12
        self.M16 = bool(OPT.get("m16", 0))
        self.V_FA = 4
        if self.M16:
            self.PA = 4
            self.PB = self.PA + MT * 4
            self.QA = self.PB + MT * 4
            self.QB = self.QA + 16
            self.V_ACC = self.QB + 16
            nkk, fr = 2, 2048
            nP, nQ = 2 * MT, 4
        else:
            self.FS = (MT + 2) * 4
            self.V_FB = self.V_FA + self.FS
            self.V_ACC = self.V_FB + self.FS
            nkk, fr = 4, 4096
            nP, nQ = MT, 2
        self.V_RD = self.V_ACC + MT * 32
        self.rd = {}
        n = 0
        for op, base, ssz, nt in (("P", 0, self.PSZ, nP), ("Q", self.QBASE, self.QSZ, nQ)):
            wins = sorted({(base + st * ssz + t * fr) >> 16 for st in range(NS) for t in range(nt)})
            for w in wins:
                for kk in range(nkk):
                    self.rd[(op, kk, w)] = self.V_RD + n
                    n += 1
        self.V_TMP = (self.V_RD + n + 1) // 2 * 2
        self.LN_MASK = 15 if self.M16 else 31
        self.LM_SHIFT = 4 if self.M16 else 5

    def acc(self, mt, nt):
        return self.V_ACC + (mt * 2 + nt) * 16

    def accs(self, mt, nt):
        b = self.acc(mt, nt)
        return f"v[{b}:{b+15}]"

    def acc16(self, mi, ni):
        return self.V_ACC + ((mi >> 1) * 2 + (ni >> 1)) * 16 + ((mi & 1) * 2 + (ni & 1)) * 4

    def quads(self):
        out = []
        if self.M16:
            for mi in range(2 * self.MT):
                for ni in range(4):
                    out.append((self.acc16(mi, ni), mi * 16, ni * 16))
        else:
            for mt in range(self.MT):
                for nt in range(2):
                    for q in range(4):
                        out.append((self.acc(mt, nt) + 4 * q, mt * 32 + 8 * q, nt * 32))
        return out

    def setup_loader(self, a, rowP_s, rowQ_s, strideP, strideQ):
        t = 20
        rq = self.BM // 4
        a(f"""
        s_sub_u32 s{S_WOFF}, s{S_WAVE}, 4
        s_lshl_b32 s{S_WOFFQ}, s{S_WOFF}, 12
        s_mul_i32 s30, s{S_WOFF}, {rq}
        s_lshl_b32 s31, s{S_WOFF}, 5
        s_mul_i32 s{S_WOFF}, s{S_WOFF}, {rq*128}
        v_lshrrev_b32 v{t}, 3, v1
        v_and_b32 v{t+2}, 7, v1
        v_lshrrev_b32 v{t+3}, 4, v1
        v_xor_b32 v{t+2}, v{t+2}, v{t+3}
        """)
        for (vld, row_s, stride, n, sw) in ((self.V_LDP, rowP_s, strideP, self.NPI, 30), (self.V_LDQ, rowQ_s, strideQ, 4, 31)):
            sh = stride.bit_length() - 1
            assert 1 << sh == stride
            for i in range(n):
                a(f"v_add_u32 v{t+4}, s{row_s}, v{t}")
                a(f"v_add_u32 v{t+4}, s{sw}, v{t+4}")
                if i:
                    a(f"v_add_u32 v{t+4}, {8*i}, v{t+4}")
                a(f"v_lshlrev_b32 v{t+4}, {sh}, v{t+4}")
                if i & 1:
                    a(f"v_xor_b32 v{t+5}, 4, v{t+2}")
                else:
                    a(f"v_mov_b32 v{t+5}, v{t+2}")
                a(f"v_lshlrev_b32 v{t+5}, 4, v{t+5}")
                a(f"v_add_u32 v{vld+i}, v{t+4}, v{t+5}")
                if i & 3:
                    a(f"v_subrev_u32 v{vld+i}, {1024*(i&3)}, v{vld+i}")

    def setup_compute(self, a):
        t = self.V_TMP
        if self.M16:
            a(f"""
            v_and_b32 v{t}, 15, v1
            v_lshrrev_b32 v{t+1}, 4, v1
            v_lshrrev_b32 v{t+2}, 1, v{t}
            v_xor_b32 v{t+2}, v{t+2}, v{t+1}
            """)
        else:
            a(f"""
            v_and_b32 v{t}, 31, v1
            v_lshrrev_b32 v{t+1}, 5, v1
            v_lshrrev_b32 v{t+2}, 1, v1
            v_and_b32 v{t+2}, 7, v{t+2}
            v_xor_b32 v{t+2}, v{t+2}, v{t+1}
            """)
        a(f"""
        v_lshrrev_b32 v{t+3}, 1, v2
        v_mul_u32_u24 v{t+3}, {self.MT*32}, v{t+3}
        v_add_u32 v{t+3}, v{t+3}, v{t}
        v_lshlrev_b32 v{t+3}, 7, v{t+3}
        v_and_b32 v{t+4}, 1, v2
        v_lshlrev_b32 v{t+4}, 6, v{t+4}
        v_add_u32 v{t+4}, v{t+4}, v{t}
        v_lshlrev_b32 v{t+4}, 7, v{t+4}
        """)
        for (op, kk, w), r in self.rd.items():
            a(f"v_xor_b32 v{t+5}, {(4 if self.M16 else 2)*kk}, v{t+2}")
            a(f"v_lshlrev_b32 v{t+5}, 4, v{t+5}")
            a(f"v_add_u32 v{r}, v{t+3 if op == 'P' else t+4}, v{t+5}")
            if w:
                a(f"v_add_u32 v{r}, {w << 16}, v{r}")
        for i in range(self.MT * 32):
            a(f"v_mov_b32 v{self.V_ACC+i}, 0")

    def rdP16(self, a, dst, stage, kk, mh):
        for j in range(self.MT):
            off = stage * self.PSZ + (mh * self.MT + j) * 2048
            a(f"ds_read_b128 v[{dst+4*j}:{dst+4*j+3}], v{self.rd[('P', kk, off >> 16)]} offset:{off & 0xffff}")

    def rdQ16(self, a, dst, stage, kk):
        for j in range(4):
            off = self.QBASE + stage * self.QSZ + j * 2048
            a(f"ds_read_b128 v[{dst+4*j}:{dst+4*j+3}], v{self.rd[('Q', kk, off >> 16)]} offset:{off & 0xffff}")

    def mfma16(self, a, P, Q, mh):
        for j in range(self.MT):
            for ni in range(4):
                r = self.acc16(mh * self.MT + j, ni)
                a(f"v_mfma_f32_16x16x32_bf16 v[{r}:{r+3}], v[{P+4*j}:{P+4*j+3}], v[{Q+4*ni}:{Q+4*ni+3}], v[{r}:{r+3}]")

    def dma(self, a, stage):
        for i in range(self.NPI):
            if i % 4 == 0:
                a(f"s_add_u32 m0, s{S_WOFF}, {stage*self.PSZ + i*1024}")
                a("s_nop 0")
            a(f"buffer_load_dwordx4 v{self.V_LDP+i}, s[{S_SRDP}:{S_SRDP+3}], s{S_OFFP} offen offset:{1024*(i&3)} lds")
        a(f"s_add_u32 m0, s{S_WOFFQ}, {self.QBASE + stage*self.QSZ}")
        a("s_nop 0")
        for i in range(4):
            a(f"buffer_load_dwordx4 v{self.V_LDQ+i}, s[{S_SRDQ}:{S_SRDQ+3}], s{S_OFFQ} offen offset:{1024*i} lds")

    def reads(self, a, fset, stage, kk):
        for mt in range(self.MT):
            off = stage * self.PSZ + mt * 4096
            a(f"ds_read_b128 v[{fset+4*mt}:{fset+4*mt+3}], v{self.rd[('P', kk, off >> 16)]} offset:{off & 0xffff}")
        for nt in range(2):
            off = self.QBASE + stage * self.QSZ + nt * 4096
            qb = fset + 4 * self.MT + 4 * nt
            a(f"ds_read_b128 v[{qb}:{qb+3}], v{self.rd[('Q', kk, off >> 16)]} offset:{off & 0xffff}")

    def mfma(self, a, fset, part=None):
        for mt in range(self.MT):
            if part is not None and (mt < self.MT // 2) != (part == 0):
                continue
            for nt in range(2):
                qb = fset + 4 * self.MT + 4 * nt
                if not OPT.get("nomfma"):
                    a(f"v_mfma_f32_32x32x16_bf16 {self.accs(mt,nt)}, v[{fset+4*mt}:{fset+4*mt+3}], v[{qb}:{qb+3}], {self.accs(mt,nt)}")

    def body(self, a, pfx, step_setup, rowP_s, rowQ_s, strideP, strideQ, tail=None, pre=None, filler=None):
        NS = self.NS
        nr = self.MT + 2
        a(f"""
        v_and_b32 v1, 63, v0
        v_lshrrev_b32 v2, 6, v0
        s_nop 0
        v_readfirstlane_b32 s{S_WAVE}, v2
        s_nop 3
        s_mov_b32 s{S_N}, 0
        s_cmp_lt_u32 s{S_WAVE}, 4
        s_cbranch_scc1 {pfx}_compute
        """)

        if OPT.get("prio") == 2:
            a("s_setprio 1")
        self.setup_loader(a, rowP_s, rowQ_s, strideP, strideQ)
        for st in range(NS - 1):
            step_setup(a)
            self.dma(a, st)
        a(f"""
        s_waitcnt vmcnt({(NS-2)*self.NDMA})
        s_barrier
        """)
        a.label(f"{pfx}_lloop")
        for u in range(NS):
            a(f"s_cmp_ge_u32 s{S_JL}, s{S_JEND}")
            a(f"s_cbranch_scc1 {pfx}_lskip{u}")
            step_setup(a)
            self.dma(a, (u + NS - 1) % NS)
            a(f"s_waitcnt vmcnt({(NS-2)*self.NDMA})")
            a(f"s_branch {pfx}_lbar{u}")
            a.label(f"{pfx}_lskip{u}")
            a("s_waitcnt vmcnt(0)")
            a.label(f"{pfx}_lbar{u}")
            a("s_barrier")
            a(f"s_add_u32 s{S_N}, s{S_N}, 1")
            a(f"s_cmp_ge_u32 s{S_N}, s{S_NEND}")
            if u < NS - 1:
                a(f"s_cbranch_scc1 {pfx}_ldone")
            else:
                a(f"s_cbranch_scc0 {pfx}_lloop")
        a.label(f"{pfx}_ldone")
        if tail:
            tail(a)
        a("s_endpgm")
        a.label(f"{pfx}_compute")
        if OPT.get("prio") == 1:
            a("s_setprio 1")
        self.setup_compute(a)
        if pre:
            pre(a)
        a("s_barrier")
        if OPT.get("stamp"):
            a("s_memtime s[60:61]")
            a("s_memrealtime s[62:63]")
            a("s_memrealtime s[76:77]")
            a("s_waitcnt lgkmcnt(0)")
        MT = self.MT
        if self.M16:
            self.rdP16(a, self.PA, 0, 0, 0)
            self.rdQ16(a, self.QA, 0, 0)
        else:
            self.reads(a, self.V_FA, 0, 0)
        a.label(f"{pfx}_loop")
        for u in range(NS):
            if self.M16:
                self.rdP16(a, self.PB, u, 0, 1)
                a(f"s_waitcnt lgkmcnt({MT})")
                self.mfma16(a, self.PA, self.QA, 0)
                if filler:
                    filler(a)
                self.rdP16(a, self.PA, u, 1, 0)
                self.rdQ16(a, self.QB, u, 1)
                a(f"s_waitcnt lgkmcnt({MT+4})")
                self.mfma16(a, self.PB, self.QA, 1)
                self.rdP16(a, self.PB, u, 1, 1)
                a(f"s_waitcnt lgkmcnt({MT})")
                self.mfma16(a, self.PA, self.QB, 0)
                if filler:
                    filler(a)
                a("s_waitcnt lgkmcnt(0)")
                a("s_barrier")
                self.rdP16(a, self.PA, (u + 1) % NS, 0, 0)
                self.rdQ16(a, self.QA, (u + 1) % NS, 0)
                self.mfma16(a, self.PB, self.QB, 1)
            else:
                self.reads(a, self.V_FB, u, 1)
                a(f"s_waitcnt lgkmcnt({nr})")
                self.mfma(a, self.V_FA)
                if filler:
                    filler(a)
                self.reads(a, self.V_FA, u, 2)
                a(f"s_waitcnt lgkmcnt({nr})")
                self.mfma(a, self.V_FB)
                self.reads(a, self.V_FB, u, 3)
                a(f"s_waitcnt lgkmcnt({nr})")
                self.mfma(a, self.V_FA)
                if filler:
                    filler(a)
                a("s_waitcnt lgkmcnt(0)")
                if OPT.get("split"):
                    self.mfma(a, self.V_FB, 0)
                    a("s_barrier")
                    self.reads(a, self.V_FA, (u + 1) % NS, 0)
                    self.mfma(a, self.V_FB, 1)
                else:
                    a("s_barrier")
                    self.reads(a, self.V_FA, (u + 1) % NS, 0)
                    self.mfma(a, self.V_FB)
            a(f"s_add_u32 s{S_N}, s{S_N}, 1")
            a(f"s_cmp_ge_u32 s{S_N}, s{S_NEND}")
            if u < NS - 1:
                a(f"s_cbranch_scc1 {pfx}_done")
            else:
                a(f"s_cbranch_scc0 {pfx}_loop")
        a.label(f"{pfx}_done")
        a("s_waitcnt lgkmcnt(0)")
        a("s_nop 15")
        if OPT.get("stamp"):
            T = self.V_TMP
            a("s_memtime s[64:65]")
            a("s_memrealtime s[66:67]")
            a("s_memrealtime s[78:79]")
            a("s_waitcnt lgkmcnt(0)")
            srd(a, 68, 44, (60 << 20) + (0 if pfx == "L_g1" else (1 << 20)), 1 << 20)
            a(f"""
            s_lshl_b32 s72, s2, 3
            s_add_u32 s72, s72, s{S_WAVE}
            s_lshl_b32 s72, s72, 5
            v_mov_b32 v{T}, 0
            """)
            for i in range(8):
                a(f"v_mov_b32 v{T+1}, s{60+i}")
                a(f"buffer_store_dword v{T+1}, v{T}, s[68:71], s72 offen offset:{4*i}")


G1 = None
G1_WGS = 240


def gen_gemm1(a):
    global G1
    C = G1 = Core(4, 3)
    name = "gemm1_kernel"
    kernel_begin(a, name)
    a(f"""
    s_cmp_ge_u32 s2, {G1_WGS}
    s_cbranch_scc1 L_g1_end
    {"s_memrealtime s[74:75]" if OPT.get("stamp") else ""}
    s_cmp_ge_u32 s2, 240
    s_cbranch_scc1 L_g1_pf
    s_load_dwordx4 s[40:43], s[0:1], {KA_WDRE}
    s_load_dwordx2 s[44:45], s[0:1], {KA_WS}
    s_waitcnt lgkmcnt(0)
    s_cmp_ge_u32 s2, 64
    s_cbranch_scc1 L_g1_ffn
    """)
    srd(a, S_SRDP, 44, WS_XN, 2048 * 1024)
    a("""
    s_lshr_b32 s21, s2, 3
    s_and_b32 s24, s2, 7
    s_lshl_b32 s24, s24, 8
    s_cmp_ge_u32 s21, 4
    s_cselect_b64 s[46:47], s[42:43], s[40:41]
    s_and_b32 s25, s21, 3
    s_lshl_b32 s25, s25, 7
    """)
    srd(a, S_SRDQ, 46, 0, 512 * 1024)
    a("s_branch L_g1_main")
    a.label("L_g1_ffn")
    srd(a, S_SRDP, 44, WS_WGU, 2816 * 1024)
    srd(a, S_SRDQ, 44, WS_XN, 2048 * 1024)
    a("""
    s_sub_u32 s23, s2, 64
    s_and_b32 s25, s23, 15
    s_lshl_b32 s25, s25, 7
    s_lshr_b32 s24, s23, 4
    s_lshl_b32 s24, s24, 8
    s_mov_b32 s21, 8
    """)
    a.label("L_g1_main")
    a(f"""
    s_mov_b32 s26, s{S_SRDP+2}
    s_mov_b32 s27, s{S_SRDQ+2}
    s_mov_b32 s{S_JL}, 0
    s_mov_b32 s{S_JEND}, 8
    s_mov_b32 s{S_NEND}, 8
    """)

    def step_setup(a):
        a(f"""
        s_lshl_b32 s{S_OFFP}, s{S_JL}, 7
        s_mov_b32 s{S_OFFQ}, s{S_OFFP}
        s_cmp_lt_u32 s{S_JL}, s{S_JEND}
        s_cselect_b32 s{S_SRDP+2}, s26, 0
        s_cselect_b32 s{S_SRDQ+2}, s27, 0
        s_add_u32 s{S_JL}, s{S_JL}, 1
        """)

    PFV = C.V_TMP + 12

    def pre(a):
        a(f"""
        s_load_dwordx4 s[48:51], s[0:1], {KA_WSRE}
        s_lshl_b32 s38, s2, 2
        s_add_u32 s38, s38, s{S_WAVE}
        s_lshl_b32 s38, s38, 10
        v_lshlrev_b32 v{PFV+8}, 4, v1
        s_waitcnt lgkmcnt(0)
        """)
        srd(a, 52, 48, 0, 2048 * 4096)
        srd(a, 56, 50, 0, 2048 * 4096)

    def filler(a):
        a(f"buffer_load_dwordx4 v[{PFV}:{PFV+3}], v{PFV+8}, s[52:55], s38 offen")
        a(f"buffer_load_dwordx4 v[{PFV+4}:{PFV+7}], v{PFV+8}, s[56:59], s38 offen")
        a(f"s_add_u32 s38, s38, {960*1024}")

    def tail(a):
        srd(a, 52, 44, WS_PART, 8 << 20)
        a(f"""
        s_lshl_b32 s38, s2, 2
        s_add_u32 s38, s38, s{S_WAVE}
        s_sub_u32 s38, s38, 4
        s_lshl_b32 s38, s38, 10
        v_lshlrev_b32 v3, 4, v1
        v_mov_b32 v4, -1
        v_mov_b32 v5, -1
        v_mov_b32 v6, -1
        v_mov_b32 v7, -1
        """)
        for i in range(9):
            a("buffer_store_dwordx4 v[4:7], v3, s[52:55], s38 offen")
            a(f"s_add_u32 s38, s38, {960*1024}")

    if OPT.get("pf", 0) == 2:
        C.body(a, "L_g1", step_setup, 24, 25, 1024, 1024, None, pre, filler)
    else:
        C.body(a, "L_g1", step_setup, 24, 25, 1024, 1024, tail if OPT.get("sent", 0) else None)
    t = C.V_TMP
    a(f"""
    v_and_b32 v{t}, {C.LN_MASK}, v1
    v_lshrrev_b32 v{t+1}, {C.LM_SHIFT}, v1
    s_lshr_b32 s28, s{S_WAVE}, 1
    s_and_b32 s29, s{S_WAVE}, 1
    s_cmp_ge_u32 s21, 8
    s_cbranch_scc1 L_g1_epi_ffn
    """)
    RS = 272
    a(f"""
    s_lshr_b32 s30, s21, 2
    s_lshl_b32 s30, s30, 21
    s_add_u32 s30, s30, {WS_B}
    s_add_u32 s32, s44, s30
    s_addc_u32 s33, s45, 0
    s_mov_b32 s34, {512*4096}
    s_mov_b32 s35, 0x00020000
    s_mul_i32 s36, s{S_WAVE}, {64*RS}
    v_mul_u32_u24 v{t+2}, {RS}, v{t}
    v_lshlrev_b32 v{t+3}, 3, v{t+1}
    v_add3_u32 v{t+2}, v{t+2}, v{t+3}, s36
    s_cmp_ge_u32 s21, 4
    s_cselect_b32 s31, 0x80008000, 0
    s_barrier
    """)
    k = 0
    for (b, moff, noff) in C.quads():
        r = t + 4 + 2 * (k % 4)
        k += 1
        a(f"v_cvt_pk_bf16_f32 v{r}, v{b}, v{b+1}")
        a(f"v_cvt_pk_bf16_f32 v{r+1}, v{b+2}, v{b+3}")
        a(f"v_xor_b32 v{r}, s31, v{r}")
        a(f"v_xor_b32 v{r+1}, s31, v{r+1}")
        a(f"ds_write_b64 v{t+2}, v[{r}:{r+1}] offset:{noff*RS + moff*2}")
    a(f"""
    v_lshrrev_b32 v{t+3}, 4, v1
    v_and_b32 v{t+4}, 15, v1
    v_lshlrev_b32 v{t+4}, 4, v{t+4}
    v_mul_u32_u24 v{t+5}, {RS}, v{t+3}
    v_add3_u32 v{t+5}, v{t+5}, v{t+4}, s36
    v_lshlrev_b32 v{t+3}, 12, v{t+3}
    v_add_u32 v{t+3}, v{t+3}, v{t+4}
    s_lshl_b32 s30, s29, 6
    s_add_u32 s30, s30, s25
    s_lshl_b32 s30, s30, 12
    s_lshl_b32 s37, s28, 7
    s_add_u32 s37, s37, s24
    s_lshl_b32 s37, s37, 1
    s_add_u32 s30, s30, s37
    s_waitcnt lgkmcnt(0)
    """)
    for i in range(16):
        a(f"ds_read_b128 v[{C.V_ACC+4*i}:{C.V_ACC+4*i+3}], v{t+5} offset:{i*4*RS}")
    for i in range(16):
        a(f"s_waitcnt lgkmcnt({15-i})")
        a(f"buffer_store_dwordx4 v[{C.V_ACC+4*i}:{C.V_ACC+4*i+3}], v{t+3}, s[32:35], s30 offen")
        a("s_add_u32 s30, s30, 0x4000")
    if OPT.get("stamp"):
        stamp(a, 3)
        a("s_waitcnt vmcnt(0)")
        stamp(a, 4)
        stamp_flush(a, "L_g1", t + 4)
    a("s_endpgm")
    a.label("L_g1_epi_ffn")
    srd(a, 32, 44, WS_H, 2048 * 4096)
    c0 = -2.0 * 0.7978845608028654 * 1.4426950408889634
    c1 = c0 * 0.044715
    RS2 = 144
    a(f"""
    s_mul_i32 s36, s{S_WAVE}, {64*RS2}
    v_mul_u32_u24 v{t+2}, {RS2}, v{t}
    v_lshlrev_b32 v{t+3}, 3, v{t+1}
    v_add3_u32 v{t+2}, v{t+2}, v{t+3}, s36
    v_mov_b32 v{t+4}, 0x{f32bits(c0):08x}
    v_mov_b32 v{t+5}, 0x{f32bits(c0):08x}
    v_mov_b32 v{t+10}, 0x{f32bits(c1):08x}
    v_mov_b32 v{t+11}, 0x{f32bits(c1):08x}
    s_barrier
    """)
    k = 0
    qd = {(m, n): r for (r, m, n) in C.quads()}
    for (G0, moff, noff) in C.quads():
        if moff % 64 >= 32:
            continue
        U0 = qd[(moff + 32, noff)]
        foff = (moff // 64) * 32 + moff % 64
        for _once in range(1):
            for _once2 in range(1):
                g = 4 + 8 * (k % 2)
                o = t + 6 + 2 * (k % 2)
                k += 1
                for p in range(2):
                    a(f"v_pk_mul_f32 v[{g+2*p}:{g+2*p+1}], v[{G0+2*p}:{G0+2*p+1}], v[{G0+2*p}:{G0+2*p+1}]")
                for p in range(2):
                    a(f"v_pk_fma_f32 v[{g+2*p}:{g+2*p+1}], v[{g+2*p}:{g+2*p+1}], v[{t+10}:{t+11}], v[{t+4}:{t+5}]")
                for p in range(2):
                    a(f"v_pk_mul_f32 v[{g+2*p}:{g+2*p+1}], v[{g+2*p}:{g+2*p+1}], v[{G0+2*p}:{G0+2*p+1}]")
                for r in range(4):
                    a(f"v_exp_f32 v{g+r}, v{g+r}")
                for p in range(2):
                    a(f"v_pk_mul_f32 v[{g+4+2*p}:{g+4+2*p+1}], v[{G0+2*p}:{G0+2*p+1}], v[{U0+2*p}:{U0+2*p+1}]")
                for p in range(2):
                    a(f"v_pk_add_f32 v[{g+2*p}:{g+2*p+1}], v[{g+2*p}:{g+2*p+1}], 1.0 op_sel_hi:[1,0]")
                for r in range(4):
                    a(f"v_rcp_f32 v{g+r}, v{g+r}")
                a("s_nop 0")
                for p in range(2):
                    a(f"v_pk_mul_f32 v[{g+2*p}:{g+2*p+1}], v[{g+2*p}:{g+2*p+1}], v[{g+4+2*p}:{g+4+2*p+1}]")
                a(f"v_cvt_pk_bf16_f32 v{o}, v{g}, v{g+1}")
                a(f"v_cvt_pk_bf16_f32 v{o+1}, v{g+2}, v{g+3}")
                a(f"ds_write_b64 v{t+2}, v[{o}:{o+1}] offset:{noff*RS2 + foff*2}")
    a(f"""
    v_lshrrev_b32 v{t+3}, 3, v1
    v_and_b32 v{t+4}, 7, v1
    v_lshlrev_b32 v{t+4}, 4, v{t+4}
    v_mul_u32_u24 v{t+5}, {RS2}, v{t+3}
    v_add3_u32 v{t+5}, v{t+5}, v{t+4}, s36
    v_lshlrev_b32 v{t+3}, 12, v{t+3}
    v_add_u32 v{t+3}, v{t+3}, v{t+4}
    s_lshl_b32 s30, s29, 6
    s_add_u32 s30, s30, s25
    s_lshl_b32 s30, s30, 12
    s_lshl_b32 s37, s28, 7
    s_add_u32 s37, s37, s24
    s_add_u32 s30, s30, s37
    s_waitcnt lgkmcnt(0)
    """)
    for i in range(8):
        a(f"ds_read_b128 v[{C.V_ACC+4*i}:{C.V_ACC+4*i+3}], v{t+5} offset:{i*8*RS2}")
    for i in range(8):
        a(f"s_waitcnt lgkmcnt({7-i})")
        a(f"buffer_store_dwordx4 v[{C.V_ACC+4*i}:{C.V_ACC+4*i+3}], v{t+3}, s[32:35], s30 offen")
        a("s_add_u32 s30, s30, 0x8000")
    if OPT.get("stamp"):
        stamp(a, 3)
        a("s_waitcnt vmcnt(0)")
        stamp(a, 4)
        stamp_flush(a, "L_g1", t + 6)
    a("s_endpgm")
    a.label("L_g1_pf")
    a(f"""
    s_load_dwordx4 s[48:51], s[0:1], {KA_WSRE}
    v_and_b32 v1, 63, v0
    v_lshrrev_b32 v2, 6, v0
    s_nop 0
    v_readfirstlane_b32 s3, v2
    s_sub_u32 s38, s2, 240
    s_lshl_b32 s38, s38, 3
    s_nop 2
    s_add_u32 s38, s38, s3
    s_lshl_b32 s38, s38, 16
    v_lshlrev_b32 v3, 4, v1
    s_mov_b32 s39, 0
    s_waitcnt lgkmcnt(0)
    """)
    srd(a, 52, 48, 0, 2048 * 4096)
    srd(a, 56, 50, 0, 2048 * 4096)
    a.label("L_g1_pfl")
    for i in range(4):
        a(f"buffer_load_dwordx4 v[{4+8*i}:{7+8*i}], v3, s[52:55], s38 offen offset:{1024*i}")
        a(f"buffer_load_dwordx4 v[{8+8*i}:{11+8*i}], v3, s[56:59], s38 offen offset:{1024*i}")
    a("""
    s_add_u32 s38, s38, 4096
    s_add_u32 s39, s39, 1
    s_cmp_lt_u32 s39, 16
    s_cbranch_scc1 L_g1_pfl
    """)
    a.label("L_g1_end")
    a("s_endpgm")
    return kernel_desc(name, C.V_TMP + 24)


G2 = None
G2_WGS = 256


def gen_gemm2(a):
    global G2
    MT = OPT.get("g2mt", 2)
    SP = 2 * MT
    LSP = SP.bit_length() - 1
    C = G2 = Core(MT, 4 if MT == 2 else 3)
    name = "gemm2_kernel"
    kernel_begin(a, name)
    if MT == 2:
        MAP = """
        s_and_b32 s23, s2, 3
        s_lshr_b32 s20, s2, 2
        s_and_b32 s20, s20, 1
        s_lshl_b32 s20, s20, 3
        s_lshr_b32 s21, s2, 3
        s_and_b32 s22, s21, 7
        s_add_u32 s20, s20, s22
        s_lshr_b32 s22, s21, 3
        s_lshl_b32 s28, s20, 2
        s_add_u32 s28, s28, s22
        """
    else:
        MAP = """
        s_and_b32 s23, s2, 7
        s_lshr_b32 s21, s2, 3
        s_and_b32 s20, s21, 15
        s_lshr_b32 s22, s21, 4
        s_mov_b32 s28, s21
        """
    a(f"""
    s_cmp_ge_u32 s2, {G2_WGS}
    s_cbranch_scc1 L_g2_end
    {"s_memrealtime s[74:75]" if OPT.get("stamp") else ""}
    s_load_dwordx4 s[40:43], s[0:1], {KA_WSRE}
    s_load_dwordx2 s[44:45], s[0:1], {KA_WS}
    s_load_dwordx2 s[48:49], s[0:1], {KA_X}
    s_load_dwordx4 s[52:55], s[0:1], {KA_OUT}
    {MAP}
    s_mul_i32 s{S_JL}, s23, 86
    s_add_u32 s{S_JEND}, s{S_JL}, 86
    s_lshr_b32 s{S_JL}, s{S_JL}, {LSP}
    s_lshr_b32 s{S_JEND}, s{S_JEND}, {LSP}
    s_sub_u32 s{S_NEND}, s{S_JEND}, s{S_JL}
    s_mul_i32 s24, s22, {C.BM}
    s_lshl_b32 s25, s20, 7
    s_waitcnt lgkmcnt(0)
    """)
    srd(a, S_SRDP, 44, WS_B, 3 * 512 * 4096)
    a(f"""
    s_add_u32 s46, s44, {WS_H}
    s_addc_u32 s47, s45, 0
    s_mov_b32 s{S_SRDQ+2}, {2048*4096}
    s_mov_b32 s{S_SRDQ+3}, 0x00020000
    """)

    def step_setup(a):
        a(f"""
        s_lshr_b32 s26, s{S_JL}, 5
        s_and_b32 s{S_OFFQ}, s{S_JL}, 31
        s_lshl_b32 s{S_OFFQ}, s{S_OFFQ}, 7
        s_lshl_b32 s27, s26, 21
        s_add_u32 s{S_OFFP}, s{S_OFFQ}, s27
        s_cmp_eq_u32 s26, 0
        s_cselect_b64 s[{S_SRDQ}:{S_SRDQ+1}], s[40:41], s[42:43]
        s_cmp_ge_u32 s26, 2
        s_cselect_b64 s[{S_SRDQ}:{S_SRDQ+1}], s[46:47], s[{S_SRDQ}:{S_SRDQ+1}]
        s_add_u32 s{S_JL}, s{S_JL}, 1
        """)

    C.body(a, "L_g2", step_setup, 24, 25, 4096, 4096)
    t = C.V_TMP
    X = t + 20
    QOFF = [(n % 32) * 1024 + (m % 32) * 2 for (r, m, n) in sorted(C.quads()) if r < C.V_ACC + 16]
    assert len(QOFF) == 4 and max(QOFF) < 32768
    srd(a, 32, 44, WS_PART, 256 * SP * 8192)
    srd(a, 56, 44, WS_FLAG, 16384)
    srd(a, 60, 48, 0, 2048 * 1024)
    srd(a, 64, 52, 0, 2048 * 1024)
    a(f"""
    s_lshl_b32 s31, s{S_WAVE}, 11
    v_lshlrev_b32 v{t}, 4, v1
    s_and_b32 s36, s{S_WAVE}, 1
    s_lshl_b32 s36, s36, 1
    s_and_b32 s37, s23, 1
    s_add_u32 s36, s36, s37
    s_lshl_b32 s36, s36, 5
    s_add_u32 s36, s36, s25
    s_lshr_b32 s37, s{S_WAVE}, 1
    s_mul_i32 s37, s37, {MT}
    s_lshr_b32 s38, s23, 1
    s_add_u32 s37, s37, s38
    s_lshl_b32 s37, s37, 5
    s_add_u32 s37, s37, s24
    v_and_b32 v{t+1}, {C.LN_MASK}, v1
    v_add_u32 v{t+1}, s36, v{t+1}
    v_lshlrev_b32 v{t+1}, 10, v{t+1}
    v_lshrrev_b32 v{t+2}, {C.LM_SHIFT}, v1
    v_lshlrev_b32 v{t+2}, 2, v{t+2}
    v_add_u32 v{t+2}, s37, v{t+2}
    v_lshlrev_b32 v{t+2}, 1, v{t+2}
    v_add_u32 v{t+1}, v{t+1}, v{t+2}
    s_mov_b32 s36, 0
    s_mov_b32 s37, 0x4000
    """)
    for tl in range(SP):
        a(f"""
        s_cmp_eq_u32 s23, {tl}
        s_cbranch_scc1 L_g2_pub{tl}
        s_lshl_b32 s30, s28, {LSP}
        s_add_u32 s30, s30, {tl}
        s_lshl_b32 s30, s30, {LSP}
        s_add_u32 s30, s30, s23
        s_lshl_b32 s30, s30, 13
        s_add_u32 s30, s30, s31
        """)
        b = C.V_ACC + tl * 16
        r = t + 4 + 8 * (tl & 1)
        for i in range(8):
            a(f"v_cvt_pk_bf16_f32 v{r+i}, v{b+2*i}, v{b+2*i+1}")
        if OPT.get("sent", 0):
            for i in range(8):
                a(f"v_min_u32 v{r+i}, -2, v{r+i}")
        a(f"buffer_store_dwordx4 v[{r}:{r+3}], v{t}, s[32:35], s30 offen sc1")
        a(f"buffer_store_dwordx4 v[{r+4}:{r+7}], v{t}, s[32:35], s30 offen offset:1024 sc1")
        a.label(f"L_g2_pub{tl}")
    if OPT.get("sent", 0):
        stamp(a, 3)
        for q in range(4):
            a(f"buffer_load_dwordx2 v[{X+2*q}:{X+2*q+1}], v{t+1}, s[60:63], s{36 + QOFF[q] // 16384} offen offset:{QOFF[q] % 16384}")
        stamp(a, 4)
    else:
        a("s_waitcnt vmcnt(0)")
        stamp(a, 3)
        for q in range(4):
            a(f"buffer_load_dwordx2 v[{X+2*q}:{X+2*q+1}], v{t+1}, s[60:63], s{36 + QOFF[q] // 16384} offen offset:{QOFF[q] % 16384}")
        a(f"""
        s_barrier
        s_cmp_lg_u32 s{S_WAVE}, 0
        s_cbranch_scc1 L_g2_wait
        s_lshl_b32 s29, s28, 8
        v_mov_b32 v{t+2}, 1
        v_mov_b32 v{t+3}, 0
        s_mov_b64 s[68:69], exec
        s_mov_b64 exec, 1
        buffer_atomic_add v{t+2}, v{t+3}, s[56:59], s29 offen
        """)
        a.label("L_g2_spin")
        a(f"""
        buffer_load_dword v{t+2}, v{t+3}, s[56:59], s29 offen sc1
        s_waitcnt vmcnt(0)
        v_readfirstlane_b32 s30, v{t+2}
        s_nop 3
        s_cmp_ge_u32 s30, {SP}
        s_cbranch_scc1 L_g2_spun
        s_sleep 1
        s_branch L_g2_spin
        """)
        a.label("L_g2_spun")
        a("s_mov_b64 exec, s[68:69]")
        a.label("L_g2_wait")
        a("s_barrier")
        stamp(a, 4)
    a(f"""
    s_lshl_b32 s38, s28, {LSP}
    s_add_u32 s38, s38, s23
    s_lshl_b32 s38, s38, {LSP}
    """)
    for tl in range(SP - 1):
        a(f"s_cmp_eq_u32 s23, {tl}")
        a(f"s_cbranch_scc1 L_g2_fin{tl}")
    for tl in [SP - 1] + list(range(SP - 1)):
        if tl != SP - 1:
            a.label(f"L_g2_fin{tl}")
        b = C.V_ACC + tl * 16
        if OPT.get("sent", 0):
            a.label(f"L_g2_poll{tl}")
        for i in range(1, SP):
            a(f"""
            s_add_u32 s30, s38, {(tl + i) % SP}
            s_lshl_b32 s30, s30, 13
            s_add_u32 s30, s30, s31
            """)
            r = C.V_ACC + ((tl + i) % SP) * 16
            a(f"buffer_load_dwordx4 v[{r}:{r+3}], v{t}, s[32:35], s30 offen sc1")
            a(f"buffer_load_dwordx4 v[{r+4}:{r+7}], v{t}, s[32:35], s30 offen offset:1024 sc1")
        if OPT.get("sent", 0):
            a("s_waitcnt vmcnt(0)")
            first = True
            for i in range(1, SP):
                r = C.V_ACC + ((tl + i) % SP) * 16
                for j in range(0, 8, 2):
                    if first:
                        a(f"v_and_b32 v{t+2}, v{r+j}, v{r+j+1}") if False else None
                        a(f"v_max_u32 v{t+2}, v{r+j}, v{r+j+1}")
                        first = False
                    else:
                        a(f"v_max3_u32 v{t+2}, v{r+j}, v{r+j+1}, v{t+2}")
            a(f"""
            v_cmp_eq_u32 vcc, -1, v{t+2}
            s_nop 1
            s_cmp_lg_u64 vcc, 0
            s_cbranch_scc0 L_g2_ok{tl}
            s_sleep 1
            s_branch L_g2_poll{tl}
            """)
            a.label(f"L_g2_ok{tl}")
        a(f"s_waitcnt vmcnt({2*(SP-1)})")
        for i in range(8):
            a(f"v_lshlrev_b32 v{t+2}, 16, v{X+i}")
            a(f"v_and_b32 v{t+3}, 0xffff0000, v{X+i}")
            a(f"v_add_f32 v{b+2*i}, v{b+2*i}, v{t+2}")
            a(f"v_add_f32 v{b+2*i+1}, v{b+2*i+1}, v{t+3}")
        for src in range(SP - 1):
            a(f"s_waitcnt vmcnt({2*(SP-2-src)})")
            for i in range(8):
                rr = C.V_ACC + ((tl + 1 + src) % SP) * 16 + i
                a(f"v_lshlrev_b32 v{t+2}, 16, v{rr}")
                a(f"v_and_b32 v{t+3}, 0xffff0000, v{rr}")
                a(f"v_add_f32 v{b+2*i}, v{b+2*i}, v{t+2}")
                a(f"v_add_f32 v{b+2*i+1}, v{b+2*i+1}, v{t+3}")
        for q in range(4):
            a(f"v_cvt_pk_bf16_f32 v{X+2*q}, v{b+4*q}, v{b+4*q+1}")
            a(f"v_cvt_pk_bf16_f32 v{X+2*q+1}, v{b+4*q+2}, v{b+4*q+3}")
            a(f"buffer_store_dwordx2 v[{X+2*q}:{X+2*q+1}], v{t+1}, s[64:67], s{36 + QOFF[q] // 16384} offen offset:{QOFF[q] % 16384}")
        if OPT.get("stamp"):
            a("s_waitcnt vmcnt(0)")
            stamp(a, 5)
            stamp_flush(a, "L_g2", t + 2)
        a("s_endpgm")
    a.label("L_g2_end")
    a("s_endpgm")
    return kernel_desc(name, X + 8)


def main():
    global ARGS
    ARGS = [x for x in sys.argv[1:] if "=" not in x]
    for x in sys.argv[1:]:
        if "=" in x:
            k, v = x.split("=")
            OPT[k] = int(v)
    hdr = open("cdna_kernels/" + NAME + ".s.ref").read().split("\n")
    top = [l for l in hdr if l.startswith(";") and "@launch" not in l and "Override" not in l and "grid=ceil" not in l]
    a = Asm()
    descs = []
    a.raw('.amdgcn_target "amdgcn-amd-amdhsa--gfx950"')
    a.raw(".text")
    descs.append(gen_prep(a))
    descs.append(gen_gemm1(a))
    descs.append(gen_gemm2(a))
    out = "\n".join(top) + "\n"
    out += f"; @launch kernel=prep_kernel grid=({PREP_WGS},1,1) block=(256,1,1) lds=0\n"
    out += f"; @launch kernel=gemm1_kernel grid=({G1_WGS},1,1) block=(512,1,1) lds={G1.LDS}\n"
    out += f"; @launch kernel=gemm2_kernel grid=({G2_WGS},1,1) block=(512,1,1) lds={G2.LDS}\n"
    if OPT.get("report"):
        out += f"; @launch kernel=report_kernel grid=(1,1,1) block=(64,1,1) lds=0\n"
        kernel_begin(a, "report_kernel")
        a(f"""
        s_cmp_ge_u32 s2, 1
        s_cbranch_scc1 L_rep_end
        s_load_dwordx4 s[4:7], s[0:1], {KA_DBG}
        s_waitcnt lgkmcnt(0)
        """)
        srd(a, 8, 4, 0, 256)
        srd(a, 12, 6, 59 << 20, 8 << 20)
        a("""
        v_lshlrev_b32 v1, 9, v0
        v_mov_b32 v2, 0
        buffer_load_dword v10, v2, s[12:15], 0 offen
        """)
        a(f"s_mov_b32 s16, {3 << 20}")
        a(f"s_mov_b32 s17, {4 << 20}")
        for k in range(5):
            a(f"buffer_load_dword v{11+k}, v1, s[12:15], s16 offen offset:{8*k}")
        for k in range(6):
            a(f"buffer_load_dword v{16+k}, v1, s[12:15], s17 offen offset:{8*k}")
        for k, task in enumerate((2040, 3450, 4860)):
            a(f"buffer_load_dword v{22+k}, v2, s[12:15], 0 offen offset:0") if False else None
            a(f"s_mov_b32 s18, {32768 + task*4}")
            a(f"buffer_load_dword v{22+k}, v2, s[12:15], s18 offen")
        for k, task in enumerate((2040, 4860)):
            a(f"s_mov_b32 s18, {task*4}")
            a(f"buffer_load_dword v{25+k}, v2, s[12:15], s18 offen")
        a("s_waitcnt vmcnt(0)")
        for k in range(16):
            a(f"v_sub_u32 v{11+k}, v{11+k}, v10")
        a("s_mov_b64 exec, 1")
        for k in range(16):
            a(f"buffer_store_dword v{11+k}, v2, s[8:11], 0 offen offset:{4*k}")
        a.label("L_rep_end")
        a("s_endpgm")
        descs.append(kernel_desc("report_kernel", 32))
    for i in range(OPT.get("dummy", 0)):
        out += f"; @launch kernel=dummy_kernel grid=(1,1,1) block=(64,1,1) lds=0\n"
    if OPT.get("dummy", 0):
        kernel_begin(a, "dummy_kernel")
        a("s_endpgm")
        descs.append(kernel_desc("dummy_kernel", 8))
    out += a.text()
    out += '.section .rodata,"a"\n'
    for d in descs:
        out += ".p2align 6\n" + d
    path = ARGS[0] if ARGS else "cdna_kernels/" + NAME + ".s"
    open(path, "w").write(out)


if __name__ == "__main__":
    main()
```
